```python
import torch

def _softmax(x, axis=-1):
    return torch.softmax(x, dim=axis)
def _gelu(x):
    return torch.nn.functional.gelu(x, approximate="tanh")
def _silu(x):
    return torch.nn.functional.silu(x)
def _sigmoid(x):
    return torch.sigmoid(x)
def _layernorm(x, axis=-1, eps=1e-5):
    m = x.mean(dim=axis, keepdim=True)
    v = x.var(dim=axis, keepdim=True, unbiased=False)
    return (x - m) / torch.sqrt(v + eps)
def _scatter_add(tgt, idx, src, axis=0):
    return tgt.clone().index_add_(axis, idx, src)
def _segment_sum(src, seg, n):
    out = torch.zeros((n,) + src.shape[1:], dtype=src.dtype)
    return out.index_add_(0, seg, src)
def _pad(x, pw):
    flat = tuple(v for pair in reversed(pw) for v in pair)
    return torch.nn.functional.pad(x, flat)

kernel_name = 'standalone__weight_only_int_squeezellm__prompt'

def setup_inputs():

    _w = (lambda a: (lambda t: t.to(torch.bfloat16) if t.is_floating_point() else t)(torch.as_tensor(a)))
    B, S, D, F = 1, 2048, 1024, 3584
    bits = 3 if (2 <= 3 <= 4) else 4
    L = 2 ** bits
    qw = torch.randint(0, L, (D, F)).to(torch.int64)
    lut = (lambda *s: torch.randn(*s, dtype=torch.bfloat16) * 0.05)(L, F)
    return {
        "x": _w((lambda *s: torch.randn(*s, dtype=torch.bfloat16) * 0.05)(B, S, D)),
        "qw": _w(qw),
        "lut": _w(lut),
    }

def reference(x, qw, lut):
    w = (lambda x, i, axis: torch.take_along_dim(x, i, dim=axis))(lut, qw, axis=0)
    w = (lambda x, dt: x.to(dt))(w, x.dtype)
    return torch.einsum('bsd,df->bsf', x, w)
```

```python
import sys

NAME = "standalone__weight_only_int_squeezellm__prompt"
NA = 4
NB = 2
PQ = 4
NSTEP = 16
A_SLOT = 32768
B_BASE = NA * A_SLOT
B_SLOT = 14336
LDS = B_BASE + NB * B_SLOT

opts = dict(prio_c=0, prio_p=0)
for a in sys.argv[2:]:
    k, v = a.split("=")
    opts[k] = int(v)

out = []
def e(s):
    out.append("    " + s)
def lab(s):
    out.append(s + ":")

S_X, S_Q, S_L, S_O = 12, 16, 20, 24
S_MT, S_NT, S_M0, S_N0 = 28, 29, 30, 31
S_C0, S_C1, S_C2, S_C3 = 32, 33, 34, 35
S_WAVE = 36
S_PW = 37
S_MASK = 38
S_QOFF = 40
S_XOFF = 41
S_TMP = 42
S_TMP2 = 43
S_OMT = 44
S_LOOP = 48
S_M0B = 49

def srd(d, lo, nbytes):
    e(f"s_mov_b32 s{d}, s{lo}")
    e(f"s_and_b32 s{d+1}, s{lo+1}, 0xffff")
    e(f"s_mov_b32 s{d+2}, {nbytes}")
    e(f"s_mov_b32 s{d+3}, 0x00020000")

hdr = f"""; fused SqueezeLLM LUT dequant + bf16 MFMA GEMM, 256x112 tile per workgroup, 4 consumer + 4 producer waves
; @launch grid=(256,1,1) block=(512,1,1) lds={LDS}
.amdgcn_target "amdgcn-amd-amdhsa--gfx950"
.text
.globl {NAME}_kernel
.p2align 8
.type {NAME}_kernel,@function
{NAME}_kernel:"""
out.append(hdr)

e("s_cmp_ge_u32 s2, 256")
e("s_cbranch_scc1 L_end")
e("s_load_dwordx8 s[4:11], s[0:1], 0")
e(f"s_and_b32 s{S_MT}, s2, 7")
e(f"s_lshr_b32 s{S_NT}, s2, 3")
e(f"s_and_b32 s{S_NT}, s{S_NT}, 3")
e(f"s_lshl_b32 s{S_MT}, s{S_MT}, 2")
e(f"s_add_u32 s{S_NT}, s{S_NT}, s{S_MT}")
e(f"s_lshr_b32 s{S_MT}, s2, 5")
e(f"s_lshl_b32 s{S_M0}, s{S_MT}, 8")
e(f"s_mul_i32 s{S_N0}, s{S_NT}, 112")
e("v_lshrrev_b32 v1, 6, v0")
e("v_and_b32 v0, 63, v0")
e(f"s_mov_b32 s{S_C0}, 0x05010400")
e(f"v_readfirstlane_b32 s{S_WAVE}, v1")
e(f"s_mov_b32 s{S_C1}, 0x07030602")
e(f"s_mov_b32 s{S_C2}, 0x05040100")
e(f"s_mov_b32 s{S_C3}, 0x07060302")
e(f"s_mov_b32 s{S_MASK}, 0x0fffffff")
e(f"s_mov_b32 s{S_MASK+1}, 0x0fffffff")
e("s_waitcnt lgkmcnt(0)")
srd(S_X, 4, 2048 * 1024 * 2)
srd(S_Q, 6, 1024 * 3584 * 4)
srd(S_L, 8, 8 * 3584 * 2)
srd(S_O, 10, 2048 * 3584 * 2)
e(f"s_cmp_ge_u32 s{S_WAVE}, 4")
e("s_cbranch_scc1 L_producer")

V_A = 2
V_B = 6
V_B6 = 10
V_OUT = 12
V_OUT6 = 13
X = [16, 60]
W = [32, 76]
ACC = 128
CVT = 104
def acc(t, mt):
    return ACC + (t * 4 + mt) * 4

if opts["prio_c"]:
    e(f"s_setprio {opts['prio_c']}")
e("v_and_b32 v14, 15, v0")
e("v_lshrrev_b32 v15, 4, v0")
e(f"s_lshl_b32 s{S_TMP}, s{S_WAVE}, 13")
e("v_lshrrev_b32 v1, 1, v14")
e("v_xor_b32 v1, v15, v1")
e("v_lshlrev_b32 v1, 4, v1")
e("v_lshl_add_u32 v104, v14, 7, v1")
e(f"v_add_u32 v{V_A}, s{S_TMP}, v104")
e(f"v_add_u32 v{V_A+1}, 0x10000, v{V_A}")
e(f"v_xor_b32 v{V_A+2}, 64, v{V_A}")
e(f"v_xor_b32 v{V_A+3}, 64, v{V_A+1}")
e(f"v_add_u32 v{V_B6}, {B_BASE + 96*128}, v104")
e(f"v_xor_b32 v{V_B6+1}, 64, v{V_B6}")
e("v_lshrrev_b32 v1, 2, v14")
e("v_and_b32 v105, 3, v14")
e("v_lshl_add_u32 v105, v1, 3, v105")
e("v_lshlrev_b32 v105, 7, v105")
e("v_lshlrev_b32 v1, 1, v1")
e("v_xor_b32 v1, v15, v1")
e("v_bfe_u32 v106, v14, 1, 1")
e("v_xor_b32 v1, v1, v106")
e("v_lshl_add_u32 v105, v1, 4, v105")
e(f"v_add_u32 v{V_B}, {B_BASE}, v105")
e(f"v_xor_b32 v1, 16, v{V_B}")
e(f"v_add_u32 v{V_B+1}, 512, v1")
e(f"v_xor_b32 v{V_B+2}, 64, v{V_B}")
e(f"v_xor_b32 v{V_B+3}, 64, v{V_B+1}")
e(f"s_lshl_b32 s{S_TMP}, s{S_WAVE}, 6")
e(f"s_add_u32 s{S_TMP}, s{S_TMP}, s{S_M0}")
e(f"v_add_u32 v1, s{S_TMP}, v14")
e("v_mul_u32_u24 v1, 7168, v1")
e(f"s_lshl_b32 s{S_TMP2}, s{S_N0}, 1")
e(f"v_add_u32 v1, s{S_TMP2}, v1")
e(f"v_lshl_add_u32 v{V_OUT}, v15, 4, v1")
e(f"v_lshl_add_u32 v{V_OUT6}, v15, 3, v1")
e(f"v_add_u32 v{V_OUT6}, 192, v{V_OUT6}")
for mt in range(4):
    e(f"s_mov_b32 s{S_OMT+mt}, {mt*16*7168}")
for r in range(112):
    e(f"v_mov_b32 v{ACC+r}, 0")

def c_reads(slotA, slotB, kh, st):
    r = []
    va = V_A + kh * 2 + (slotA >> 1)
    ao = (slotA & 1) * 32768
    bo = slotB * B_SLOT
    def xr(mt):
        return f"ds_read_b128 v[{X[st]+mt*4}:{X[st]+mt*4+3}], v{va} offset:{ao + mt*2048}"
    def wr(t):
        if t < 6:
            return f"ds_read_b128 v[{W[st]+t*4}:{W[st]+t*4+3}], v{V_B + kh*2 + (t&1)} offset:{bo + (t>>1)*4096}"
        return f"ds_read_b128 v[{W[st]+t*4}:{W[st]+t*4+3}], v{V_B6 + kh} offset:{bo}"
    r.append(wr(0))
    for mt in range(4):
        r.append(xr(mt))
    for t in range(1, 7):
        r.append(wr(t))
    return r

def c_phase(st, reads):
    idx = 0
    for t in range(7):
        for mt in range(4):
            a = acc(t, mt)
            e(f"v_mfma_f32_16x16x32_bf16 v[{a}:{a+3}], v[{W[st]+t*4}:{W[st]+t*4+3}], v[{X[st]+mt*4}:{X[st]+mt*4+3}], v[{a}:{a+3}]")
            if idx < len(reads):
                e(reads[idx])
            idx += 1
    e("s_waitcnt lgkmcnt(0)")

e("s_barrier")
for r in c_reads(0, 0, 0, 0):
    e(r)
e(f"s_mov_b32 s{S_LOOP}, 0")
e("s_waitcnt lgkmcnt(0)")
lab("L_cloop")
for u in range(4):
    c_phase(0, c_reads(u % NA, u % NB, 1, 1))
    e("s_barrier")
    c_phase(1, c_reads((u + 1) % NA, (u + 1) % NB, 0, 0))
e(f"s_add_u32 s{S_LOOP}, s{S_LOOP}, 1")
e(f"s_cmp_lt_u32 s{S_LOOP}, 4")
e("s_cbranch_scc1 L_cloop")
e("s_nop 7")
e("s_nop 3")
ci = 0
for mt in range(4):
    for T in range(3):
        c = CVT + (ci % 4) * 4
        ci += 1
        a, b = acc(2 * T, mt), acc(2 * T + 1, mt)
        e(f"v_cvt_pk_bf16_f32 v{c}, v{a}, v{a+1}")
        e(f"v_cvt_pk_bf16_f32 v{c+1}, v{a+2}, v{a+3}")
        e(f"v_cvt_pk_bf16_f32 v{c+2}, v{b}, v{b+1}")
        e(f"v_cvt_pk_bf16_f32 v{c+3}, v{b+2}, v{b+3}")
        e(f"buffer_store_dwordx4 v[{c}:{c+3}], v{V_OUT}, s[{S_O}:{S_O+3}], s{S_OMT+mt} offen offset:{T*64}")
    c = CVT + (ci % 4) * 4
    ci += 1
    a = acc(6, mt)
    e(f"v_cvt_pk_bf16_f32 v{c}, v{a}, v{a+1}")
    e(f"v_cvt_pk_bf16_f32 v{c+1}, v{a+2}, v{a+3}")
    e(f"buffer_store_dwordx2 v[{c}:{c+1}], v{V_OUT6}, s[{S_O}:{S_O+3}], s{S_OMT+mt} offen")
e("s_endpgm")

lab("L_producer")
V_QOFF = 16
V_XOFF = 24
V_W = 32
V_LOFF = 34
V_LO0, V_LO1, V_HI0, V_HI1 = 36, 40, 44, 48
V_SEL = 52
V_PT = 60
V_OUTB = 76
V_T = 92
V_LH = 108
V_Q = 128

if opts["prio_p"]:
    e(f"s_setprio {opts['prio_p']}")
e(f"s_sub_u32 s{S_PW}, s{S_WAVE}, 4")
e("v_lshrrev_b32 v1, 5, v0")
e("v_and_b32 v2, 31, v0")
e(f"s_mul_i32 s{S_TMP}, s{S_PW}, 229376")
e(f"s_lshl_b32 s{S_TMP2}, s{S_N0}, 2")
e(f"s_add_u32 s{S_TMP}, s{S_TMP}, s{S_TMP2}")
e("v_mul_u32_u24 v3, 114688, v1")
e("v_lshl_add_u32 v3, v2, 4, v3")
e(f"v_add_u32 v{V_QOFF}, s{S_TMP}, v3")
for kk in range(1, 8):
    e(f"v_add_u32 v{V_QOFF+kk}, {kk*14336}, v{V_QOFF}")
e(f"s_lshl_b32 s{S_TMP2}, s{S_N0}, 1")
e("v_lshlrev_b32 v3, 3, v2")
e(f"v_add_u32 v{V_LOFF}, s{S_TMP2}, v3")
e(f"s_mov_b64 exec, s[{S_MASK}:{S_MASK+1}]")
vm = []
for l in range(8):
    e(f"s_mov_b32 s{S_TMP}, {l*7168}")
    e(f"buffer_load_dwordx2 v[{V_T+2*l}:{V_T+2*l+1}], v{V_LOFF}, s[{S_L}:{S_L+3}], s{S_TMP} offen")
    vm.append("L")

def q_issue(stage, first=False):
    base = V_Q + (stage % PQ) * 32
    for kk in range(8):
        e(f"buffer_load_dwordx4 v[{base+kk*4}:{base+kk*4+3}], v{V_QOFF+kk}, s[{S_Q}:{S_Q+3}], s{S_QOFF} offen")
        vm.append(("q", stage))
    e(f"s_add_u32 s{S_QOFF}, s{S_QOFF}, {64*14336}")

def a_issue(stage):
    slot = stage % NA
    for hf in range(2):
        e(f"s_add_u32 m0, s{S_M0B}, {slot*A_SLOT + hf*4096}")
        e("s_nop 0")
        for i4 in range(4):
            i = hf * 4 + i4
            e(f"buffer_load_dwordx4 v{V_XOFF+i}, s[{S_X}:{S_X+3}], s{S_XOFF} offen offset:{i4*1024} lds")
            vm.append(("a", stage))
    e(f"s_add_u32 s{S_XOFF}, s{S_XOFF}, 128")

e(f"s_mov_b32 s{S_QOFF}, 0")
q_issue(0)
e("s_mov_b64 exec, -1")
e("v_lshrrev_b32 v3, 3, v0")
e("v_and_b32 v4, 7, v0")
e("v_lshrrev_b32 v5, 4, v0")
e("v_xor_b32 v4, v4, v5")
e("v_lshlrev_b32 v4, 4, v4")
e("v_lshl_add_u32 v3, v3, 11, v4")
e(f"s_lshl_b32 s{S_TMP}, s{S_PW}, 6")
e(f"s_add_u32 s{S_TMP}, s{S_TMP}, s{S_M0}")
e(f"s_lshl_b32 s{S_TMP}, s{S_TMP}, 11")
e(f"v_add_u32 v3, s{S_TMP}, v3")
e("v_xor_b32 v4, 64, v3")
for i in range(8):
    src = 4 if (i & 1) else 3
    e(f"v_add_u32 v{V_XOFF+i}, {i*16384 - (i&3)*1024}, v{src}")
e(f"s_lshl_b32 s{S_M0B}, s{S_PW}, 13")
e(f"s_mov_b32 s{S_XOFF}, 0")
a_issue(0)
e(f"s_mov_b64 exec, s[{S_MASK}:{S_MASK+1}]")
q_issue(1)
e("s_mov_b64 exec, -1")
a_issue(1)
e(f"s_mov_b64 exec, s[{S_MASK}:{S_MASK+1}]")
q_issue(2)
q_issue(3)
e("s_mov_b64 exec, -1")
e(f"s_lshl_b32 s{S_TMP}, s{S_PW}, 1")
e(f"v_add_u32 v3, s{S_TMP}, v1")
e("v_and_b32 v4, 7, v2")
e("v_lshlrev_b32 v5, 1, v2")
e("v_and_b32 v5, 7, v5")
e("v_cmp_gt_u32 vcc, 24, v2")
e("s_nop 1")
e("v_cndmask_b32 v4, v5, v4, vcc")
e("v_xor_b32 v4, v3, v4")
e("v_lshlrev_b32 v4, 4, v4")
e("v_lshl_add_u32 v4, v2, 9, v4")
e(f"v_add_u32 v{V_W}, {B_BASE}, v4")
e(f"v_xor_b32 v4, 16, v{V_W}")
e(f"v_add_u32 v{V_W+1}, 256, v4")

def younger(tag):
    last = max(i for i, t in enumerate(vm) if t == tag)
    return len(vm) - 1 - last

e(f"s_waitcnt vmcnt({younger('L')})")
for d in range(2):
    for hb in range(2):
        t0, t1, t2, t3 = [V_T + 2 * (4 * hb + k) + d for k in range(4)]
        lo = (V_LO0, V_LO1)[hb]
        hi = (V_HI0, V_HI1)[hb]
        for cc in range(2):
            sc = (S_C0, S_C1)[cc]
            col = 2 * d + cc
            e(f"v_perm_b32 v{V_PT}, v{t1}, v{t0}, s{sc}")
            e(f"v_perm_b32 v{V_PT+1}, v{t3}, v{t2}, s{sc}")
            e(f"v_perm_b32 v{lo+col}, v{V_PT+1}, v{V_PT}, s{S_C2}")
            e(f"v_perm_b32 v{hi+col}, v{V_PT+1}, v{V_PT}, s{S_C3}")

def p_body(s, w1=None, w2=None):
    st = s + 1
    if s + 3 < NSTEP:
        a_issue(s + 3)
    e(f"s_mov_b64 exec, s[{S_MASK}:{S_MASK+1}]")
    x1 = younger(("q", st))
    e(f"s_waitcnt vmcnt({x1 if w1 is None else w1})")
    base = V_Q + (st % PQ) * 32
    Q = lambda kk, i: base + kk * 4 + i
    for hb in range(2):
        for i in range(4):
            e(f"v_lshl_or_b32 v{V_PT+hb*8+i*2}, v{Q(4*hb+1,i)}, 8, v{Q(4*hb,i)}")
            e(f"v_lshl_or_b32 v{V_PT+hb*8+i*2+1}, v{Q(4*hb+3,i)}, 8, v{Q(4*hb+2,i)}")
    if st + PQ < NSTEP:
        q_issue(st + PQ)
    for hb in range(2):
        for i in range(4):
            e(f"v_lshl_or_b32 v{V_SEL+hb*4+i}, v{V_PT+hb*8+i*2+1}, 16, v{V_PT+hb*8+i*2}")
    bo = (st % NB) * B_SLOT
    for i in range(4):
        for hb in range(2):
            e(f"v_perm_b32 v{V_LH+i*4+hb*2}, v{V_LO1+i}, v{V_LO0+i}, v{V_SEL+hb*4+i}")
            e(f"v_perm_b32 v{V_LH+i*4+hb*2+1}, v{V_HI1+i}, v{V_HI0+i}, v{V_SEL+hb*4+i}")
    for i in range(4):
        for hb in range(2):
            e(f"v_perm_b32 v{V_OUTB+i*4+hb*2}, v{V_LH+i*4+hb*2+1}, v{V_LH+i*4+hb*2}, s{S_C0}")
            e(f"v_perm_b32 v{V_OUTB+i*4+hb*2+1}, v{V_LH+i*4+hb*2+1}, v{V_LH+i*4+hb*2}, s{S_C1}")
        e(f"ds_write_b128 v{V_W+(i>>1)}, v[{V_OUTB+i*4}:{V_OUTB+i*4+3}] offset:{bo + (i&1)*128}")
    e("s_mov_b64 exec, -1")
    x2 = younger(("a", st))
    e(f"s_waitcnt vmcnt({x2 if w2 is None else w2}) lgkmcnt(0)")
    e("s_barrier")
    return x1, x2

save_out, save_vm = list(out), list(vm)
ws = {}
for s in range(-1, 11):
    x1, x2 = p_body(s)
    u = (s + 1) % 4
    a, b = ws.get(u, (99, 99))
    ws[u] = (min(a, x1), min(b, x2))
out[:] = save_out
vm[:] = save_vm
e(f"s_mov_b32 s{S_LOOP}, 0")
lab("L_ploop")
for s in range(-1, 3):
    u = (s + 1) % 4
    p_body(s, *ws[u])
e(f"s_add_u32 s{S_LOOP}, s{S_LOOP}, 1")
e(f"s_cmp_lt_u32 s{S_LOOP}, 3")
e("s_cbranch_scc1 L_ploop")
tmp = list(out)
for s in range(3, 11):
    p_body(s)
out[:] = tmp
for s in range(11, 15):
    p_body(s)
lab("L_end")
e("s_endpgm")

out.append(f""".section .rodata,"a"
.p2align 6
.amdhsa_kernel {NAME}_kernel
  .amdhsa_next_free_vgpr 256
  .amdhsa_next_free_sgpr 56
  .amdhsa_accum_offset 256
  .amdhsa_group_segment_fixed_size 0
  .amdhsa_kernarg_size 48
  .amdhsa_user_sgpr_count 2
  .amdhsa_user_sgpr_kernarg_segment_ptr 1
  .amdhsa_system_sgpr_workgroup_id_x 1
.end_amdhsa_kernel""")

open(sys.argv[1], "w").write("\n".join(out) + "\n")
```

```python
import sys

NAME = "standalone__weight_only_int_squeezellm__prompt"
NA = 4
NB = 2
PQ = 4
NSTEP = 16
A_SLOT = 32768
B_BASE = NA * A_SLOT
B_SLOT = 14336
LDS = B_BASE + NB * B_SLOT

opts = dict(prio_c=0, prio_p=0, diag=0, sametile=0, touch=0, tdx=6, tdq=8, t0=2, stflag=0, pure=0, noq=0, noa=0, rot=0, split8=0, utouch=0, ra=0, rb=0, rc=0, pf=0, p0=2, p1=8)
for a in sys.argv[2:]:
    k, v = a.split("=")
    opts[k] = int(v)

out = []
def e(s):
    out.append("    " + s)
def lab(s):
    out.append(s + ":")

S_X, S_Q, S_L, S_O = 12, 16, 20, 24
S_MT, S_NT, S_M0, S_N0 = 28, 29, 30, 31
S_C0, S_C1, S_C2, S_C3 = 32, 33, 34, 35
S_WAVE = 36
S_PW = 37
S_MASK = 38
S_QOFF = 40
S_XOFF = 41
S_TMP = 42
S_TMP2 = 43
S_OOFF = 44
S_LOOP = 48
S_M0B = 49
S_TQ = 50
S_TX = 51
S_ST = 52
S_SI = 54
V_STAMP = [250]
def stamp():
    if not opts["diag"]: return
    e(f"s_memtime s[{S_ST}:{S_ST+1}]")
def stamp_commit():
    if not opts["diag"]: return
    e(f"v_cmp_eq_u32 vcc, s{S_SI}, v0")
    e(f"v_mov_b32 v{V_STAMP[0]+1}, s{S_ST}")
    e("s_nop 0")
    e(f"v_cndmask_b32 v{V_STAMP[0]}, v{V_STAMP[0]}, v{V_STAMP[0]+1}, vcc")
    e(f"s_add_u32 s{S_SI}, s{S_SI}, 1")
def stamp_now():
    if not opts["diag"]: return
    stamp()
    e("s_waitcnt lgkmcnt(0)")
    stamp_commit()
def stamp_flush():
    if not opts["diag"]: return
    e("s_mov_b64 exec, -1")
    e("s_load_dwordx2 s[56:57], s[0:1], 40")
    e("s_waitcnt vmcnt(0) lgkmcnt(0)")
    stamp_now()
    e("s_mov_b32 s60, s56")
    e("s_and_b32 s61, s57, 0xffff")
    e("s_mov_b32 s62, 0x100000")
    e("s_mov_b32 s63, 0x00020000")
    e(f"s_lshl_b32 s58, s2, 3")
    e(f"s_add_u32 s58, s58, s{S_WAVE}")
    e("s_lshl_b32 s58, s58, 8")
    e("v_lshlrev_b32 v1, 2, v0")
    e(f"buffer_store_dword v{V_STAMP[0]}, v1, s[60:63], s58 offen")

def srd(d, lo, nbytes):
    e(f"s_mov_b32 s{d}, s{lo}")
    e(f"s_and_b32 s{d+1}, s{lo+1}, 0xffff")
    e(f"s_mov_b32 s{d+2}, {nbytes}")
    e(f"s_mov_b32 s{d+3}, 0x00020000")

hdr = f"""; fused SqueezeLLM LUT dequant + bf16 MFMA GEMM, 256x112 tile per workgroup, 4 consumer + 4 producer waves
; @launch grid=(256,1,1) block=(512,1,1) lds={LDS}
.amdgcn_target "amdgcn-amd-amdhsa--gfx950"
.text
.globl {NAME}_kernel
.p2align 8
.type {NAME}_kernel,@function
{NAME}_kernel:"""
out.append(hdr)

e("s_cmp_ge_u32 s2, 256")
e("s_cbranch_scc1 L_end")
e("s_load_dwordx8 s[4:11], s[0:1], 0")
if opts["diag"]:
    e(f"s_mov_b32 s{S_SI}, 1")
    stamp()
e(f"s_and_b32 s{S_MT}, s2, 7")
e(f"s_lshr_b32 s{S_NT}, s2, 3")
e(f"s_and_b32 s{S_NT}, s{S_NT}, 3")
e(f"s_lshl_b32 s{S_MT}, s{S_MT}, 2")
e(f"s_add_u32 s{S_NT}, s{S_NT}, s{S_MT}")
e(f"s_lshr_b32 s{S_MT}, s2, 5")
if opts["sametile"]:
    e(f"s_mov_b32 s{S_MT}, 0")
    e(f"s_and_b32 s{S_NT}, s2, 7")
e(f"s_lshl_b32 s{S_M0}, s{S_MT}, 8")
e(f"s_mul_i32 s{S_N0}, s{S_NT}, 112")
e("v_lshrrev_b32 v1, 6, v0")
e("v_and_b32 v0, 63, v0")
e(f"s_mov_b32 s{S_C0}, 0x05010400")
e(f"v_readfirstlane_b32 s{S_WAVE}, v1")
e(f"s_mov_b32 s{S_C1}, 0x07030602")
e(f"s_mov_b32 s{S_C2}, 0x05040100")
e(f"s_mov_b32 s{S_C3}, 0x07060302")
if opts["split8"]:
    e("s_branch L_producer")
e(f"s_cmp_ge_u32 s{S_WAVE}, 4")
e("s_cbranch_scc1 L_producer")

V_A = 2
V_B = 6
V_B6 = 10
V_OUT = 12
V_EW = 13
V_EW6 = 14
V_ER = 15
X = [16, 60]
W = [32, 76]
ACC = 128
CVT = 104
ERS = 240
def acc(t, mt):
    return ACC + (t * 4 + mt) * 4

if opts["pure"]:
    e("s_endpgm")
if opts["prio_c"]:
    e(f"s_setprio {opts['prio_c']}")
e("v_and_b32 v110, 15, v0")
e("v_lshrrev_b32 v111, 4, v0")
e(f"s_lshl_b32 s{S_TMP}, s{S_WAVE}, 13")
e("v_lshrrev_b32 v1, 1, v110")
e("v_xor_b32 v1, v111, v1")
e("v_lshlrev_b32 v1, 4, v1")
e("v_lshl_add_u32 v104, v110, 7, v1")
e(f"v_add_u32 v{V_A}, s{S_TMP}, v104")
e(f"v_add_u32 v{V_A+1}, 0x10000, v{V_A}")
e(f"v_xor_b32 v{V_A+2}, 64, v{V_A}")
e(f"v_xor_b32 v{V_A+3}, 64, v{V_A+1}")
e(f"v_add_u32 v{V_B6}, {B_BASE + 96*128}, v104")
e(f"v_xor_b32 v{V_B6+1}, 64, v{V_B6}")
e("v_lshrrev_b32 v1, 2, v110")
e("v_and_b32 v105, 3, v110")
e("v_lshl_add_u32 v105, v1, 3, v105")
e("v_lshlrev_b32 v105, 7, v105")
e("v_lshlrev_b32 v1, 1, v1")
e("v_xor_b32 v1, v111, v1")
e("v_bfe_u32 v106, v110, 1, 1")
e("v_xor_b32 v1, v1, v106")
e("v_lshl_add_u32 v105, v1, 4, v105")
e(f"v_add_u32 v{V_B}, {B_BASE}, v105")
e(f"v_xor_b32 v1, 16, v{V_B}")
e(f"v_add_u32 v{V_B+1}, 512, v1")
e(f"v_xor_b32 v{V_B+2}, 64, v{V_B}")
e(f"v_xor_b32 v{V_B+3}, 64, v{V_B+1}")
e(f"s_lshl_b32 s{S_TMP}, s{S_WAVE}, 14")
e(f"v_mul_u32_u24 v1, {ERS}, v110")
e(f"v_add_u32 v1, s{S_TMP}, v1")
e(f"v_lshl_add_u32 v{V_EW}, v111, 4, v1")
e(f"v_lshl_add_u32 v{V_EW6}, v111, 3, v1")
e("v_mul_u32_u24 v1, 4682, v0")
e("v_lshrrev_b32 v1, 16, v1")
e("v_mul_u32_u24 v105, 14, v1")
e("v_sub_u32 v105, v0, v105")
e(f"v_mul_u32_u24 v106, {ERS}, v1")
e("v_lshl_add_u32 v106, v105, 4, v106")
e(f"v_add_u32 v{V_ER}, s{S_TMP}, v106")
e(f"s_lshl_b32 s{S_TMP}, s{S_WAVE}, 6")
e(f"s_add_u32 s{S_TMP}, s{S_TMP}, s{S_M0}")
e(f"v_add_u32 v1, s{S_TMP}, v1")
e("v_mul_u32_u24 v1, 7168, v1")
e(f"s_lshl_b32 s{S_TMP2}, s{S_N0}, 1")
e(f"v_add_u32 v1, s{S_TMP2}, v1")
e(f"v_lshl_add_u32 v{V_OUT}, v105, 4, v1")
for r in range(112):
    e(f"v_mov_b32 v{ACC+r}, 0")
e("s_waitcnt lgkmcnt(0)")
srd(S_O, 10, 2048 * 3584 * 2)
if opts["diag"]:
    e(f"v_mov_b32 v{V_STAMP[0]}, s{S_ST}")
S_T = 16
S_TOFF, S_TINC, S_TLIM = 45, 46, 47
V_TOFF, V_TD = 240, 241
def touch():
    if not opts["touch"]: return
    global tcount
    tcount += 1
    e(f"s_cmp_lt_u32 s{S_TOFF}, s{S_TLIM}")
    e(f"s_cbranch_scc0 L_tskip{tcount}")
    e(f"buffer_load_dword v{V_TD}, v{V_TOFF}, s[{S_T}:{S_T+3}], s{S_TOFF} offen")
    lab(f"L_tskip{tcount}")
    e(f"s_add_u32 s{S_TOFF}, s{S_TOFF}, s{S_TINC}")
tcount = 0
if opts["touch"]:
    two = opts["touch"] == 2
    qwave = 2 if two else 1
    e(f"s_lshr_b32 s{S_TMP}, s2, 3")
    e(f"s_and_b32 s{S_TMP2}, s2, 7")
    e(f"s_lshl_b32 s55, s{S_TMP}, 6")
    e(f"v_add_u32 v1, s55, v0")
    e("v_lshlrev_b32 v1, 11, v1")
    e(f"s_lshl_b32 s55, s{S_WAVE}, 6")
    e(f"v_add_u32 v242, s55, v1")
    if two:
        e("v_cmp_le_u32 vcc, 28, v0")
        e("v_subrev_u32 v1, 28, v0")
        e("s_nop 0")
        e("v_cndmask_b32 v243, v0, v1, vcc")
        e("v_cndmask_b32 v244, 0, 1, vcc")
        e("v_lshlrev_b32 v243, 6, v243")
        nl = 56
    else:
        e("v_cmp_le_u32 vcc, 14, v0")
        e("v_subrev_u32 v1, 14, v0")
        e("s_nop 0")
        e("v_cndmask_b32 v243, v0, v1, vcc")
        e("v_cndmask_b32 v244, 0, 1, vcc")
        e("v_lshlrev_b32 v243, 7, v243")
        nl = 28
    e(f"s_lshl_b32 s55, s{S_TMP}, 1")
    e(f"v_add_u32 v244, s55, v244")
    e("v_mul_u32_u24 v244, 14336, v244")
    e("v_add_u32 v243, v243, v244")
    e(f"s_mul_i32 s55, s{S_TMP2}, 1792")
    e("v_add_u32 v243, s55, v243")
    e("v_bfrev_b32 v245, 1")
    e(f"v_cmp_gt_u32 vcc, {nl}, v0")
    e("s_nop 1")
    e("v_cndmask_b32 v243, v245, v243, vcc")
    e(f"s_cmp_lt_u32 s{S_WAVE}, {qwave}")
    e("s_cselect_b64 vcc, -1, 0")
    e(f"s_cselect_b32 s{S_T}, s4, s6")
    e(f"s_cselect_b32 s{S_T+1}, s5, s7")
    e(f"s_mov_b32 s{S_T+2}, {1024*3584*4}")
    e(f"s_cselect_b32 s{S_T+2}, {2048*1024*2}, s{S_T+2}")
    e(f"s_mov_b32 s{S_TINC}, {64*14336}")
    e(f"s_cselect_b32 s{S_TINC}, 128, s{S_TINC}")
    e(f"s_mov_b32 s{S_TLIM}, {16*64*14336}")
    e(f"s_cselect_b32 s{S_TLIM}, {16*128}, s{S_TLIM}")
    e(f"s_mov_b32 s{S_TOFF}, {opts['t0']*64*14336}")
    e(f"s_cselect_b32 s{S_TOFF}, {opts['t0']*128}, s{S_TOFF}")
    e(f"s_and_b32 s{S_T+1}, s{S_T+1}, 0xffff")
    e(f"s_mov_b32 s{S_T+3}, 0x00020000")
    e(f"v_cndmask_b32 v{V_TOFF}, v243, v242, vcc")
    e(f"s_cmp_gt_u32 s{S_WAVE}, {qwave}")
    e(f"s_cselect_b32 s{S_TLIM}, 0, s{S_TLIM}")
    nmin = min(opts["tdx"], opts["tdq"]); nmax = max(opts["tdx"], opts["tdq"])
    for k in range(opts["t0"], nmin):
        touch()
    assert opts["tdq"] >= opts["tdx"]
    e(f"s_cmp_lg_u32 s{S_WAVE}, {qwave}")
    e("s_cbranch_scc1 L_tq_done")
    for k in range(nmin, nmax):
        touch()
    lab("L_tq_done")

S_PX, S_PQ = 16, 20
S_PQOFF, S_PXOFF, S_PST = 45, 46, 47
V_PQO, V_PXO, V_PD = 240, 241, 244
pcount = 0
def pf_stage(dyn):
    global pcount
    pcount += 1
    if dyn:
        e(f"s_cmp_lt_u32 s{S_PST}, 16")
        e(f"s_cbranch_scc0 L_pskip{pcount}")
    e(f"buffer_load_dwordx4 v[{V_PD}:{V_PD+3}], v{V_PQO}, s[{S_PQ}:{S_PQ+3}], s{S_PQOFF} offen")
    e(f"s_and_b32 s{S_TMP}, s{S_PST}, 3")
    e(f"s_cmp_lg_u32 s{S_TMP}, s{S_WAVE}")
    e(f"s_cbranch_scc1 L_pskip{pcount}")
    e(f"s_lshl_b32 s{S_PXOFF}, s{S_PST}, 7")
    e(f"buffer_load_dwordx4 v[{V_PD}:{V_PD+3}], v{V_PXO}, s[{S_PX}:{S_PX+3}], s{S_PXOFF} offen")
    lab(f"L_pskip{pcount}")
    e(f"s_add_u32 s{S_PQOFF}, s{S_PQOFF}, {64*14336}")
    e(f"s_add_u32 s{S_PST}, s{S_PST}, 1")
if opts["pf"]:
    srd(S_PX, 4, 2048 * 1024 * 2)
    srd(S_PQ, 6, 1024 * 3584 * 4)
    e(f"s_lshr_b32 s{S_TMP}, s2, 3")
    e(f"s_lshl_b32 s{S_TMP}, s{S_TMP}, 1")
    e(f"s_lshr_b32 s{S_TMP2}, s{S_WAVE}, 1")
    e(f"s_add_u32 s{S_TMP}, s{S_TMP}, s{S_TMP2}")
    e(f"s_mul_i32 s{S_TMP}, s{S_TMP}, 14336")
    e(f"s_and_b32 s{S_TMP2}, s2, 7")
    e(f"s_mul_i32 s{S_TMP2}, s{S_TMP2}, 1792")
    e(f"s_add_u32 s{S_TMP}, s{S_TMP}, s{S_TMP2}")
    e(f"s_and_b32 s{S_TMP2}, s{S_WAVE}, 1")
    e(f"s_mul_i32 s{S_TMP2}, s{S_TMP2}, 896")
    e(f"s_add_u32 s{S_TMP}, s{S_TMP}, s{S_TMP2}")
    e("v_lshlrev_b32 v1, 4, v0")
    e(f"v_add_u32 v1, s{S_TMP}, v1")
    e("v_bfrev_b32 v245, 1")
    e("v_cmp_gt_u32 vcc, 56, v0")
    e("s_nop 1")
    e(f"v_cndmask_b32 v{V_PQO}, v245, v1, vcc")
    e("v_lshrrev_b32 v1, 3, v0")
    e(f"s_lshl_b32 s{S_TMP}, s2, 3")
    e(f"v_add_u32 v1, s{S_TMP}, v1")
    e("v_lshlrev_b32 v1, 11, v1")
    e("v_and_b32 v245, 7, v0")
    e(f"v_lshl_add_u32 v{V_PXO}, v245, 4, v1")
    e(f"s_mov_b32 s{S_PST}, {opts['p0']}")
    e(f"s_mov_b32 s{S_PQOFF}, {opts['p0']*64*14336}")
    for k in range(opts["p0"], opts["p1"]):
        pf_stage(False)

def c_reads(slotA, slotB, kh, st):
    r = []
    va = V_A + kh * 2 + (slotA >> 1)
    ao = (slotA & 1) * 32768
    bo = slotB * B_SLOT
    def xr(mt):
        return f"ds_read_b128 v[{X[st]+mt*4}:{X[st]+mt*4+3}], v{va} offset:{ao + mt*2048}"
    def wr(t):
        if t < 6:
            return f"ds_read_b128 v[{W[st]+t*4}:{W[st]+t*4+3}], v{V_B + kh*2 + (t&1)} offset:{bo + (t>>1)*4096}"
        return f"ds_read_b128 v[{W[st]+t*4}:{W[st]+t*4+3}], v{V_B6 + kh} offset:{bo}"
    r.append(wr(0))
    for mt in range(4):
        r.append(xr(mt))
    for t in range(1, 7):
        r.append(wr(t))
    return r

def c_phase(st, reads, commit=False):
    idx = 0
    for t in range(7):
        for mt in range(4):
            a = acc(t, mt)
            e(f"v_mfma_f32_16x16x32_bf16 v[{a}:{a+3}], v[{W[st]+t*4}:{W[st]+t*4+3}], v[{X[st]+mt*4}:{X[st]+mt*4+3}], v[{a}:{a+3}]")
            if idx < len(reads):
                e(reads[idx])
            idx += 1
    e("s_waitcnt lgkmcnt(0)")
    if commit:
        stamp_commit()

e("s_barrier")
stamp()
for r in c_reads(0, 0, 0, 0):
    e(r)
e(f"s_mov_b32 s{S_LOOP}, 0")
e("s_waitcnt lgkmcnt(0)")
stamp_commit()
lab("L_cloop")
for u in range(4):
    c_phase(0, c_reads(u % NA, u % NB, 1, 1))
    e("s_barrier")
    stamp()
    touch()
    if opts["pf"] and opts["p1"] < 16:
        pf_stage(True)
    c_phase(1, c_reads((u + 1) % NA, (u + 1) % NB, 0, 0), True)
e(f"s_add_u32 s{S_LOOP}, s{S_LOOP}, 1")
e(f"s_cmp_lt_u32 s{S_LOOP}, 4")
e("s_cbranch_scc1 L_cloop")
e("s_nop 7")
e("s_nop 3")
ci = 0
for mt in range(4):
    for T in range(3):
        c = CVT + (ci % 6) * 4
        ci += 1
        a, b = acc(2 * T, mt), acc(2 * T + 1, mt)
        e(f"v_cvt_pk_bf16_f32 v{c}, v{a}, v{a+1}")
        e(f"v_cvt_pk_bf16_f32 v{c+1}, v{a+2}, v{a+3}")
        e(f"v_cvt_pk_bf16_f32 v{c+2}, v{b}, v{b+1}")
        e(f"v_cvt_pk_bf16_f32 v{c+3}, v{b+2}, v{b+3}")
        e(f"ds_write_b128 v{V_EW}, v[{c}:{c+3}] offset:{mt*16*ERS + T*64}")
    c = CVT + (ci % 6) * 4
    ci += 1
    a = acc(6, mt)
    e(f"v_cvt_pk_bf16_f32 v{c}, v{a}, v{a+1}")
    e(f"v_cvt_pk_bf16_f32 v{c+1}, v{a+2}, v{a+3}")
    e(f"ds_write_b64 v{V_EW6}, v[{c}:{c+1}] offset:{mt*16*ERS + 192}")
e("s_mov_b32 s38, -1")
e("s_mov_b32 s39, 0x00ffffff")
e("s_waitcnt lgkmcnt(0)")
stamp_now()
e("s_mov_b64 exec, s[38:39]")
for it in range(16):
    e(f"ds_read_b128 v[{16+it*4}:{16+it*4+3}], v{V_ER} offset:{it*4*ERS}")
e(f"s_mov_b32 s{S_OOFF}, 0")
stf = ["", " nt", " sc1", " sc0 sc1", " sc0 sc1 nt"][opts["stflag"]]
for it in range(16):
    e(f"s_waitcnt lgkmcnt({15-it})")
    e(f"buffer_store_dwordx4 v[{16+it*4}:{16+it*4+3}], v{V_OUT}, s[{S_O}:{S_O+3}], s{S_OOFF} offen{stf}")
    if it < 15:
        e(f"s_add_u32 s{S_OOFF}, s{S_OOFF}, {4*7168}")
stamp_flush()
e("s_endpgm")

lab("L_producer")
V_STAMP[0] = 124
V_QOFF = 16
V_XOFF = 24
V_W = 32
V_LOFF = 34
V_LO0, V_LO1, V_HI0, V_HI1 = 36, 40, 44, 48
V_SEL = 52
V_PT = 60
V_OUTB = 76
V_T = 92
V_LH = 108
V_Q = 128

if opts["prio_p"]:
    e(f"s_setprio {opts['prio_p']}")
e(f"s_and_b32 s{S_PW}, s{S_WAVE}, 3")
e("v_lshrrev_b32 v1, 5, v0")
e("v_and_b32 v2, 31, v0")
e("v_cmp_gt_u32 vcc, 28, v2")
e("v_bfrev_b32 v6, 1")
e(f"s_mul_i32 s{S_TMP}, s{S_PW}, 229376")
e(f"s_lshl_b32 s{S_TMP2}, s{S_N0}, 2")
e(f"s_add_u32 s{S_TMP}, s{S_TMP}, s{S_TMP2}")
e("v_mul_u32_u24 v3, 114688, v1")
e("v_lshl_add_u32 v3, v2, 4, v3")
e(f"v_add_u32 v3, s{S_TMP}, v3")
e(f"v_cndmask_b32 v{V_QOFF}, v6, v3, vcc")
for kk in range(1, 8):
    e(f"v_add_u32 v{V_QOFF+kk}, {kk*14336}, v{V_QOFF}")
e(f"s_lshl_b32 s{S_TMP2}, s{S_N0}, 1")
e("v_lshlrev_b32 v3, 3, v2")
e(f"v_add_u32 v3, s{S_TMP2}, v3")
e(f"v_cndmask_b32 v{V_LOFF}, v6, v3, vcc")
e("v_lshrrev_b32 v3, 3, v0")
e("v_and_b32 v4, 7, v0")
e("v_lshrrev_b32 v5, 4, v0")
e("v_xor_b32 v4, v4, v5")
e("v_lshlrev_b32 v4, 4, v4")
e("v_lshl_add_u32 v3, v3, 11, v4")
e(f"s_lshl_b32 s{S_TMP}, s{S_PW}, 6")
e(f"s_add_u32 s{S_TMP}, s{S_TMP}, s{S_M0}")
e(f"s_lshl_b32 s{S_TMP}, s{S_TMP}, 11")
e(f"v_add_u32 v3, s{S_TMP}, v3")
e("v_xor_b32 v4, 64, v3")
for i in range(8):
    src = 4 if (i & 1) else 3
    e(f"v_add_u32 v{V_XOFF+i}, {i*16384 - (i&3)*1024}, v{src}")
e(f"s_lshl_b32 s{S_M0B}, s{S_PW}, 13")
S_QST = 50
if opts["ra"] or opts["rb"] or opts["rc"]:
    e(f"s_mul_i32 s{S_QST}, s{S_MT}, {opts['ra']}")
    e(f"s_lshr_b32 s{S_TMP}, s2, 3")
    e(f"s_and_b32 s{S_TMP}, s{S_TMP}, 3")
    e(f"s_mul_i32 s{S_TMP}, s{S_TMP}, {opts['rb']}")
    e(f"s_add_u32 s{S_QST}, s{S_QST}, s{S_TMP}")
    e(f"s_and_b32 s{S_TMP}, s2, 7")
    e(f"s_mul_i32 s{S_TMP}, s{S_TMP}, {opts['rc']}")
    e(f"s_add_u32 s{S_QST}, s{S_QST}, s{S_TMP}")
    e(f"s_and_b32 s{S_QST}, s{S_QST}, 15")
else:
    e(f"s_mov_b32 s{S_QST}, 0")
e(f"s_lshl_b32 s{S_XOFF}, s{S_QST}, 7")
e(f"s_mul_i32 s{S_QOFF}, s{S_QST}, {64*14336}")
e(f"s_lshl_b32 s{S_TMP}, s{S_PW}, 1")
e(f"v_add_u32 v3, s{S_TMP}, v1")
e("v_and_b32 v4, 7, v2")
e("v_lshlrev_b32 v5, 1, v2")
e("v_and_b32 v5, 7, v5")
e("v_cmp_gt_u32 s[38:39], 24, v2")
e("v_mov_b32 v7, 0x40000")
e("s_nop 0")
e("v_cndmask_b32 v4, v5, v4, s[38:39]")
e("v_xor_b32 v4, v3, v4")
e("v_lshlrev_b32 v4, 4, v4")
e("v_lshl_add_u32 v4, v2, 9, v4")
e(f"v_add_u32 v4, {B_BASE}, v4")
e(f"v_cndmask_b32 v{V_W}, v7, v4, vcc")
e(f"v_xor_b32 v4, 16, v{V_W}")
e(f"v_add_u32 v{V_W+1}, 256, v4")
e("s_waitcnt lgkmcnt(0)")
srd(S_L, 8, 8 * 3584 * 2)
srd(S_Q, 6, 1024 * 3584 * 4)
srd(S_X, 4, 2048 * 1024 * 2)
if opts["diag"]:
    e(f"v_mov_b32 v{V_STAMP[0]}, s{S_ST}")

vm = []
if opts["split8"]:
    e(f"s_cmp_ge_u32 s{S_WAVE}, 4")
    e("s_cselect_b64 vcc, -1, 0")
    for k in range(4):
        e(f"v_cndmask_b32 v{V_QOFF+k}, v{V_QOFF+k}, v{V_QOFF+4+k}, vcc")
        e(f"v_cndmask_b32 v{V_XOFF+k}, v{V_XOFF+k}, v{V_XOFF+4+k}, vcc")
if opts["utouch"]:
    e("v_lshlrev_b32 v127, 11, v0")


def q_items(stage):
    base = V_Q + (stage % PQ) * 32
    it = []
    NI = 4 if opts["split8"] else 8
    for kk in range(NI):
        ins = [f"buffer_load_dwordx4 v[{base+kk*4}:{base+kk*4+3}], v{V_QOFF+kk}, s[{S_Q}:{S_Q+3}], s{S_QOFF} offen"]
        if opts["noq"]:
            ins = [f"buffer_load_dword v{base+kk*4}, v{V_LOFF}, s[{S_L}:{S_L+3}], 0 offen"]
        if kk == NI - 1:
            ins.append(f"s_add_u32 s{S_QST}, s{S_QST}, 1")
            ins.append(f"s_and_b32 s{S_QST}, s{S_QST}, 15")
            ins.append(f"s_mul_i32 s{S_QOFF}, s{S_QST}, {64*14336}")
        it.append((("q", stage), ins, None))
    return it

def a_items(stage):
    slot = stage % NA
    it = []
    NI = 4 if opts["split8"] else 8
    for i in range(NI):
        pre = None
        if i % 4 == 0:
            pre = f"s_add_u32 m0, s{S_M0B}, {slot*A_SLOT + (i//4)*4096}"
        ins = [f"buffer_load_dwordx4 v{V_XOFF+i}, s[{S_X}:{S_X+3}], s{S_XOFF} offen offset:{(i&3)*1024} lds"]
        if opts["noa"]:
            ins = [f"buffer_load_dword v126, v{V_LOFF}, s[{S_L}:{S_L+3}], 0 offen"]
            if opts["utouch"] and i == 0:
                ins = [f"buffer_load_dword v126, v127, s[{S_X}:{S_X+3}], 0 offen"]
        if i == NI - 1:
            ins.append(f"s_add_u32 s{S_XOFF}, s{S_XOFF}, 128")
            ins.append(f"s_and_b32 s{S_XOFF}, s{S_XOFF}, 2047")
        it.append((("a", stage), ins, pre))
    return it

def emit_item(item, padded=False):
    tag, ins, pre = item
    if pre is not None and not padded:
        e(pre)
        e("s_nop 0")
    for s in ins:
        e(s)
    vm.append(tag)

def younger(tag):
    last = max(i for i, t in enumerate(vm) if t == tag)
    return len(vm) - 1 - last

for l in range(8):
    e(f"s_mov_b32 s{S_TMP}, {l*7168}")
    e(f"buffer_load_dwordx2 v[{V_T+2*l}:{V_T+2*l+1}], v{V_LOFF}, s[{S_L}:{S_L+3}], s{S_TMP} offen")
    vm.append("L")
for it in q_items(0): emit_item(it)
for it in a_items(0): emit_item(it)

e(f"s_waitcnt vmcnt({younger('L')})")
stamp_now()
for d in range(2):
    for hb in range(2):
        t0, t1, t2, t3 = [V_T + 2 * (4 * hb + k) + d for k in range(4)]
        lo = (V_LO0, V_LO1)[hb]
        hi = (V_HI0, V_HI1)[hb]
        for cc in range(2):
            sc = (S_C0, S_C1)[cc]
            col = 2 * d + cc
            e(f"v_perm_b32 v{V_PT}, v{t1}, v{t0}, s{sc}")
            e(f"v_perm_b32 v{V_PT+1}, v{t3}, v{t2}, s{sc}")
            e(f"v_perm_b32 v{lo+col}, v{V_PT+1}, v{V_PT}, s{S_C2}")
            e(f"v_perm_b32 v{hi+col}, v{V_PT+1}, v{V_PT}, s{S_C3}")

sched = {-1: [("q", 1), ("a", 1), ("q", 2)], 0: [("a", 2), ("q", 3), ("a", 3)],
         1: [("q", 4), ("a", 4), ("q", 5)], 2: [("a", 5), ("q", 6), ("q", 7)]}
for s in range(3, 15):
    g = []
    if s + 3 < NSTEP: g.append(("a", s + 3))
    if s + 5 < NSTEP: g.append(("q", s + 5))
    sched[s] = g

def p_body(s):
    st = s + 1
    base = V_Q + (st % PQ) * 32
    Q = lambda kk, i: base + kk * 4 + i
    bo = (st % NB) * B_SLOT
    valu = []
    for hb in range(2):
        for i in range(4):
            valu.append(f"v_lshl_or_b32 v{V_PT+hb*8+i*2}, v{Q(4*hb+1,i)}, 8, v{Q(4*hb,i)}")
            valu.append(f"v_lshl_or_b32 v{V_PT+hb*8+i*2+1}, v{Q(4*hb+3,i)}, 8, v{Q(4*hb+2,i)}")
    NP1 = len(valu)
    for hb in range(2):
        for i in range(4):
            valu.append(f"v_lshl_or_b32 v{V_SEL+hb*4+i}, v{V_PT+hb*8+i*2+1}, 16, v{V_PT+hb*8+i*2}")
    for i in range(4):
        for hb in range(2):
            valu.append(f"v_perm_b32 v{V_LH+i*4+hb*2}, v{V_LO1+i}, v{V_LO0+i}, v{V_SEL+hb*4+i}")
            valu.append(f"v_perm_b32 v{V_LH+i*4+hb*2+1}, v{V_HI1+i}, v{V_HI0+i}, v{V_SEL+hb*4+i}")
    for i in range(4):
        for hb in range(2):
            valu.append(f"v_perm_b32 v{V_OUTB+i*4+hb*2}, v{V_LH+i*4+hb*2+1}, v{V_LH+i*4+hb*2}, s{S_C0}")
            valu.append(f"v_perm_b32 v{V_OUTB+i*4+hb*2+1}, v{V_LH+i*4+hb*2+1}, v{V_LH+i*4+hb*2}, s{S_C1}")
        valu.append(f"ds_write_b128 v{V_W+(i>>1)}, v[{V_OUTB+i*4}:{V_OUTB+i*4+3}] offset:{bo + (i&1)*128}")
    if opts["pure"]:
        valu = ["s_nop 0"] * 17
    items = []
    for kind, stage in sched[s]:
        its = q_items(stage) if kind == "q" else a_items(stage)
        late = (kind == "q" and stage % PQ == st % PQ)
        for it in its:
            items.append((it, late))
    e(f"s_waitcnt vmcnt({younger(('q', st))})")
    n = len(items)
    nv = len(valu)
    pos = []
    for k in range(n):
        p = (k * nv) // n if n else 0
        if items[k][1]:
            p = max(p, NP1)
        pos.append(p)
    for k in range(1, n):
        pos[k] = max(pos[k], pos[k - 1])
    k = 0
    for vi in range(nv + 1):
        while k < n and pos[k] == vi:
            emit_item(items[k][0])
            k += 1
        if vi < nv:
            e(valu[vi])
    e(f"s_waitcnt vmcnt({younger(('a', st))}) lgkmcnt(0)")
    stamp_commit()
    if not opts["pure"]:
        e("s_barrier")
    stamp()

bodies = {}
for s in range(-1, 15):
    start = len(out)
    p_body(s)
    bodies[s] = out[start:]
    del out[start:]
import re
for s in range(3, 7):
    a, b = bodies[s], bodies[s + 4]
    assert len(a) == len(b)
    for i in range(len(a)):
        if a[i] != b[i]:
            ma = re.match(r"(\s*s_waitcnt vmcnt\()(\d+)(\).*)", a[i])
            mb = re.match(r"(\s*s_waitcnt vmcnt\()(\d+)(\).*)", b[i])
            assert ma and mb and ma.group(3) == mb.group(3), (a[i], b[i])
            a[i] = ma.group(1) + str(min(int(ma.group(2)), int(mb.group(2)))) + ma.group(3)
stamp()
for s in range(-1, 3):
    out.extend(bodies[s])
e(f"s_mov_b32 s{S_LOOP}, 0")
lab("L_ploop")
for s in range(3, 7):
    out.extend(bodies[s])
e(f"s_add_u32 s{S_LOOP}, s{S_LOOP}, 1")
e(f"s_cmp_lt_u32 s{S_LOOP}, 2")
e("s_cbranch_scc1 L_ploop")
for s in range(11, 15):
    out.extend(bodies[s])
if opts["diag"]:
    e("s_waitcnt lgkmcnt(0)")
    stamp_commit()
    stamp_flush()
lab("L_end")
e("s_endpgm")

out.append(f""".section .rodata,"a"
.p2align 6
.amdhsa_kernel {NAME}_kernel
  .amdhsa_next_free_vgpr 256
  .amdhsa_next_free_sgpr 64
  .amdhsa_accum_offset 256
  .amdhsa_group_segment_fixed_size 0
  .amdhsa_kernarg_size 48
  .amdhsa_user_sgpr_count 2
  .amdhsa_user_sgpr_kernarg_segment_ptr 1
  .amdhsa_system_sgpr_workgroup_id_x 1
.end_amdhsa_kernel""")

open(sys.argv[1], "w").write("\n".join(out) + "\n")
```

```python
import sys

NAME = "standalone__weight_only_int_squeezellm__prompt"
NA = 4
NB = 2
PQ = 4
NSTEP = 16
A_SLOT = 32768
B_BASE = NA * A_SLOT
B_SLOT = 14336
LDS = B_BASE + NB * B_SLOT

opts = dict(prio_c=0, prio_p=0, diag=0, sametile=0, touch=0, tdx=6, tdq=8, t0=2, stflag=0, pure=0, noq=0, noa=0, rot=0, split8=0, utouch=0, ra=0, rb=0, rc=0, pf=0, p0=2, p1=8, dbg=0)
for a in sys.argv[2:]:
    k, v = a.split("=")
    opts[k] = int(v)

out = []
def e(s):
    out.append("    " + s)
def lab(s):
    out.append(s + ":")

S_X, S_Q, S_L, S_O = 12, 16, 20, 24
S_MT, S_NT, S_M0, S_N0 = 28, 29, 30, 31
S_C0, S_C1, S_C2, S_C3 = 32, 33, 34, 35
S_WAVE = 36
S_PW = 37
S_MASK = 38
S_QOFF = 40
S_XOFF = 41
S_TMP = 42
S_TMP2 = 43
S_OOFF = 44
S_LOOP = 48
S_M0B = 49
S_TQ = 50
S_TX = 51
S_ST = 52
S_SI = 54
V_STAMP = [250]
def stamp():
    if not opts["diag"]: return
    e(f"s_memtime s[{S_ST}:{S_ST+1}]")
def stamp_commit():
    if not opts["diag"]: return
    e(f"v_cmp_eq_u32 vcc, s{S_SI}, v0")
    e(f"v_mov_b32 v{V_STAMP[0]+1}, s{S_ST}")
    e("s_nop 0")
    e(f"v_cndmask_b32 v{V_STAMP[0]}, v{V_STAMP[0]}, v{V_STAMP[0]+1}, vcc")
    e(f"s_add_u32 s{S_SI}, s{S_SI}, 1")
def stamp_now():
    if not opts["diag"]: return
    stamp()
    e("s_waitcnt lgkmcnt(0)")
    stamp_commit()
def stamp_flush():
    if not opts["diag"]: return
    e("s_mov_b64 exec, -1")
    e("s_load_dwordx2 s[56:57], s[0:1], 40")
    e("s_waitcnt vmcnt(0) lgkmcnt(0)")
    stamp_now()
    e("s_mov_b32 s60, s56")
    e("s_and_b32 s61, s57, 0xffff")
    e("s_mov_b32 s62, 0x100000")
    e("s_mov_b32 s63, 0x00020000")
    e(f"s_lshl_b32 s58, s2, 3")
    e(f"s_add_u32 s58, s58, s{S_WAVE}")
    e("s_lshl_b32 s58, s58, 8")
    e("v_lshlrev_b32 v1, 2, v0")
    e(f"buffer_store_dword v{V_STAMP[0]}, v1, s[60:63], s58 offen")

def srd(d, lo, nbytes):
    e(f"s_mov_b32 s{d}, s{lo}")
    e(f"s_and_b32 s{d+1}, s{lo+1}, 0xffff")
    e(f"s_mov_b32 s{d+2}, {nbytes}")
    e(f"s_mov_b32 s{d+3}, 0x00020000")

hdr = f"""; fused SqueezeLLM LUT dequant + bf16 MFMA GEMM, 256x112 tile per workgroup, 4 consumer + 4 producer waves
; @launch grid=(256,1,1) block=(512,1,1) lds={LDS}
.amdgcn_target "amdgcn-amd-amdhsa--gfx950"
.text
.globl {NAME}_kernel
.p2align 8
.type {NAME}_kernel,@function
{NAME}_kernel:"""
out.append(hdr)

e("s_cmp_ge_u32 s2, 256")
e("s_cbranch_scc1 L_end")
e("s_load_dwordx8 s[4:11], s[0:1], 0")
if opts["dbg"]:
    e("s_memtime s[64:65]")
    e("s_memrealtime s[66:67]")
if opts["diag"]:
    e(f"s_mov_b32 s{S_SI}, 1")
    stamp()
e(f"s_and_b32 s{S_MT}, s2, 7")
e(f"s_lshr_b32 s{S_NT}, s2, 3")
e(f"s_and_b32 s{S_NT}, s{S_NT}, 3")
e(f"s_lshl_b32 s{S_MT}, s{S_MT}, 2")
e(f"s_add_u32 s{S_NT}, s{S_NT}, s{S_MT}")
e(f"s_lshr_b32 s{S_MT}, s2, 5")
if opts["sametile"]:
    e(f"s_mov_b32 s{S_MT}, 0")
    e(f"s_and_b32 s{S_NT}, s2, 7")
e(f"s_lshl_b32 s{S_M0}, s{S_MT}, 8")
e(f"s_mul_i32 s{S_N0}, s{S_NT}, 112")
e("v_lshrrev_b32 v1, 6, v0")
e("v_and_b32 v0, 63, v0")
e(f"s_mov_b32 s{S_C0}, 0x05010400")
e(f"v_readfirstlane_b32 s{S_WAVE}, v1")
e(f"s_mov_b32 s{S_C1}, 0x07030602")
e(f"s_mov_b32 s{S_C2}, 0x05040100")
e(f"s_mov_b32 s{S_C3}, 0x07060302")
if opts["split8"]:
    e("s_branch L_producer")
e(f"s_cmp_ge_u32 s{S_WAVE}, 4")
e("s_cbranch_scc1 L_producer")

V_A = 2
V_B = 6
V_B6 = 10
V_OUT = 12
V_EW = 13
V_EW6 = 14
V_ER = 15
X = [16, 60]
W = [32, 76]
ACC = 128
CVT = 104
ERS = 240
def acc(t, mt):
    return ACC + (t * 4 + mt) * 4

if opts["pure"]:
    e("s_endpgm")
if opts["prio_c"]:
    e(f"s_setprio {opts['prio_c']}")
e("v_and_b32 v110, 15, v0")
e("v_lshrrev_b32 v111, 4, v0")
e(f"s_lshl_b32 s{S_TMP}, s{S_WAVE}, 13")
e("v_lshrrev_b32 v1, 1, v110")
e("v_xor_b32 v1, v111, v1")
e("v_lshlrev_b32 v1, 4, v1")
e("v_lshl_add_u32 v104, v110, 7, v1")
e(f"v_add_u32 v{V_A}, s{S_TMP}, v104")
e(f"v_add_u32 v{V_A+1}, 0x10000, v{V_A}")
e(f"v_xor_b32 v{V_A+2}, 64, v{V_A}")
e(f"v_xor_b32 v{V_A+3}, 64, v{V_A+1}")
e(f"v_add_u32 v{V_B6}, {B_BASE + 96*128}, v104")
e(f"v_xor_b32 v{V_B6+1}, 64, v{V_B6}")
e("v_lshrrev_b32 v1, 2, v110")
e("v_and_b32 v105, 3, v110")
e("v_lshl_add_u32 v105, v1, 3, v105")
e("v_lshlrev_b32 v105, 7, v105")
e("v_lshlrev_b32 v1, 1, v1")
e("v_xor_b32 v1, v111, v1")
e("v_bfe_u32 v106, v110, 1, 1")
e("v_xor_b32 v1, v1, v106")
e("v_lshl_add_u32 v105, v1, 4, v105")
e(f"v_add_u32 v{V_B}, {B_BASE}, v105")
e(f"v_xor_b32 v1, 16, v{V_B}")
e(f"v_add_u32 v{V_B+1}, 512, v1")
e(f"v_xor_b32 v{V_B+2}, 64, v{V_B}")
e(f"v_xor_b32 v{V_B+3}, 64, v{V_B+1}")
e(f"s_lshl_b32 s{S_TMP}, s{S_WAVE}, 14")
e(f"v_mul_u32_u24 v1, {ERS}, v110")
e(f"v_add_u32 v1, s{S_TMP}, v1")
e(f"v_lshl_add_u32 v{V_EW}, v111, 4, v1")
e(f"v_lshl_add_u32 v{V_EW6}, v111, 3, v1")
e("v_mul_u32_u24 v1, 4682, v0")
e("v_lshrrev_b32 v1, 16, v1")
e("v_mul_u32_u24 v105, 14, v1")
e("v_sub_u32 v105, v0, v105")
e(f"v_mul_u32_u24 v106, {ERS}, v1")
e("v_lshl_add_u32 v106, v105, 4, v106")
e(f"v_add_u32 v{V_ER}, s{S_TMP}, v106")
e(f"s_lshl_b32 s{S_TMP}, s{S_WAVE}, 6")
e(f"s_add_u32 s{S_TMP}, s{S_TMP}, s{S_M0}")
e(f"v_add_u32 v1, s{S_TMP}, v1")
e("v_mul_u32_u24 v1, 7168, v1")
e(f"s_lshl_b32 s{S_TMP2}, s{S_N0}, 1")
e(f"v_add_u32 v1, s{S_TMP2}, v1")
e(f"v_lshl_add_u32 v{V_OUT}, v105, 4, v1")
for r in range(112):
    e(f"v_mov_b32 v{ACC+r}, 0")
e("s_waitcnt lgkmcnt(0)")
srd(S_O, 10, 2048 * 3584 * 2)
if opts["diag"]:
    e(f"v_mov_b32 v{V_STAMP[0]}, s{S_ST}")
S_T = 16
S_TOFF, S_TINC, S_TLIM = 45, 46, 47
V_TOFF, V_TD = 240, 241
def touch():
    if not opts["touch"]: return
    global tcount
    tcount += 1
    e(f"s_cmp_lt_u32 s{S_TOFF}, s{S_TLIM}")
    e(f"s_cbranch_scc0 L_tskip{tcount}")
    e(f"buffer_load_dword v{V_TD}, v{V_TOFF}, s[{S_T}:{S_T+3}], s{S_TOFF} offen")
    lab(f"L_tskip{tcount}")
    e(f"s_add_u32 s{S_TOFF}, s{S_TOFF}, s{S_TINC}")
tcount = 0
if opts["touch"]:
    two = opts["touch"] == 2
    qwave = 2 if two else 1
    e(f"s_lshr_b32 s{S_TMP}, s2, 3")
    e(f"s_and_b32 s{S_TMP2}, s2, 7")
    e(f"s_lshl_b32 s55, s{S_TMP}, 6")
    e(f"v_add_u32 v1, s55, v0")
    e("v_lshlrev_b32 v1, 11, v1")
    e(f"s_lshl_b32 s55, s{S_WAVE}, 6")
    e(f"v_add_u32 v242, s55, v1")
    if two:
        e("v_cmp_le_u32 vcc, 28, v0")
        e("v_subrev_u32 v1, 28, v0")
        e("s_nop 0")
        e("v_cndmask_b32 v243, v0, v1, vcc")
        e("v_cndmask_b32 v244, 0, 1, vcc")
        e("v_lshlrev_b32 v243, 6, v243")
        nl = 56
    else:
        e("v_cmp_le_u32 vcc, 14, v0")
        e("v_subrev_u32 v1, 14, v0")
        e("s_nop 0")
        e("v_cndmask_b32 v243, v0, v1, vcc")
        e("v_cndmask_b32 v244, 0, 1, vcc")
        e("v_lshlrev_b32 v243, 7, v243")
        nl = 28
    e(f"s_lshl_b32 s55, s{S_TMP}, 1")
    e(f"v_add_u32 v244, s55, v244")
    e("v_mul_u32_u24 v244, 14336, v244")
    e("v_add_u32 v243, v243, v244")
    e(f"s_mul_i32 s55, s{S_TMP2}, 1792")
    e("v_add_u32 v243, s55, v243")
    e("v_bfrev_b32 v245, 1")
    e(f"v_cmp_gt_u32 vcc, {nl}, v0")
    e("s_nop 1")
    e("v_cndmask_b32 v243, v245, v243, vcc")
    e(f"s_cmp_lt_u32 s{S_WAVE}, {qwave}")
    e("s_cselect_b64 vcc, -1, 0")
    e(f"s_cselect_b32 s{S_T}, s4, s6")
    e(f"s_cselect_b32 s{S_T+1}, s5, s7")
    e(f"s_mov_b32 s{S_T+2}, {1024*3584*4}")
    e(f"s_cselect_b32 s{S_T+2}, {2048*1024*2}, s{S_T+2}")
    e(f"s_mov_b32 s{S_TINC}, {64*14336}")
    e(f"s_cselect_b32 s{S_TINC}, 128, s{S_TINC}")
    e(f"s_mov_b32 s{S_TLIM}, {16*64*14336}")
    e(f"s_cselect_b32 s{S_TLIM}, {16*128}, s{S_TLIM}")
    e(f"s_mov_b32 s{S_TOFF}, {opts['t0']*64*14336}")
    e(f"s_cselect_b32 s{S_TOFF}, {opts['t0']*128}, s{S_TOFF}")
    e(f"s_and_b32 s{S_T+1}, s{S_T+1}, 0xffff")
    e(f"s_mov_b32 s{S_T+3}, 0x00020000")
    e(f"v_cndmask_b32 v{V_TOFF}, v243, v242, vcc")
    e(f"s_cmp_gt_u32 s{S_WAVE}, {qwave}")
    e(f"s_cselect_b32 s{S_TLIM}, 0, s{S_TLIM}")
    nmin = min(opts["tdx"], opts["tdq"]); nmax = max(opts["tdx"], opts["tdq"])
    for k in range(opts["t0"], nmin):
        touch()
    assert opts["tdq"] >= opts["tdx"]
    e(f"s_cmp_lg_u32 s{S_WAVE}, {qwave}")
    e("s_cbranch_scc1 L_tq_done")
    for k in range(nmin, nmax):
        touch()
    lab("L_tq_done")

S_PX, S_PQ = 16, 20
S_PQOFF, S_PXOFF, S_PST = 45, 46, 47
V_PQO, V_PXO, V_PD = 240, 241, 244
pcount = 0
def pf_stage(dyn):
    global pcount
    pcount += 1
    if dyn:
        e(f"s_cmp_lt_u32 s{S_PST}, 16")
        e(f"s_cbranch_scc0 L_pskip{pcount}")
    e(f"buffer_load_dwordx4 v[{V_PD}:{V_PD+3}], v{V_PQO}, s[{S_PQ}:{S_PQ+3}], s{S_PQOFF} offen")
    e(f"s_and_b32 s{S_TMP}, s{S_PST}, 3")
    e(f"s_cmp_lg_u32 s{S_TMP}, s{S_WAVE}")
    e(f"s_cbranch_scc1 L_pskip{pcount}")
    e(f"s_lshl_b32 s{S_PXOFF}, s{S_PST}, 7")
    e(f"buffer_load_dwordx4 v[{V_PD}:{V_PD+3}], v{V_PXO}, s[{S_PX}:{S_PX+3}], s{S_PXOFF} offen")
    lab(f"L_pskip{pcount}")
    e(f"s_add_u32 s{S_PQOFF}, s{S_PQOFF}, {64*14336}")
    e(f"s_add_u32 s{S_PST}, s{S_PST}, 1")
if opts["pf"]:
    srd(S_PX, 4, 2048 * 1024 * 2)
    srd(S_PQ, 6, 1024 * 3584 * 4)
    e(f"s_lshr_b32 s{S_TMP}, s2, 3")
    e(f"s_lshl_b32 s{S_TMP}, s{S_TMP}, 1")
    e(f"s_lshr_b32 s{S_TMP2}, s{S_WAVE}, 1")
    e(f"s_add_u32 s{S_TMP}, s{S_TMP}, s{S_TMP2}")
    e(f"s_mul_i32 s{S_TMP}, s{S_TMP}, 14336")
    e(f"s_and_b32 s{S_TMP2}, s2, 7")
    e(f"s_mul_i32 s{S_TMP2}, s{S_TMP2}, 1792")
    e(f"s_add_u32 s{S_TMP}, s{S_TMP}, s{S_TMP2}")
    e(f"s_and_b32 s{S_TMP2}, s{S_WAVE}, 1")
    e(f"s_mul_i32 s{S_TMP2}, s{S_TMP2}, 896")
    e(f"s_add_u32 s{S_TMP}, s{S_TMP}, s{S_TMP2}")
    e("v_lshlrev_b32 v1, 4, v0")
    e(f"v_add_u32 v1, s{S_TMP}, v1")
    e("v_bfrev_b32 v245, 1")
    e("v_cmp_gt_u32 vcc, 56, v0")
    e("s_nop 1")
    e(f"v_cndmask_b32 v{V_PQO}, v245, v1, vcc")
    e("v_lshrrev_b32 v1, 3, v0")
    e(f"s_lshl_b32 s{S_TMP}, s2, 3")
    e(f"v_add_u32 v1, s{S_TMP}, v1")
    e("v_lshlrev_b32 v1, 11, v1")
    e("v_and_b32 v245, 7, v0")
    e(f"v_lshl_add_u32 v{V_PXO}, v245, 4, v1")
    e(f"s_mov_b32 s{S_PST}, {opts['p0']}")
    e(f"s_mov_b32 s{S_PQOFF}, {opts['p0']*64*14336}")
    for k in range(opts["p0"], opts["p1"]):
        pf_stage(False)

def c_reads(slotA, slotB, kh, st):
    r = []
    va = V_A + kh * 2 + (slotA >> 1)
    ao = (slotA & 1) * 32768
    bo = slotB * B_SLOT
    def xr(mt):
        return f"ds_read_b128 v[{X[st]+mt*4}:{X[st]+mt*4+3}], v{va} offset:{ao + mt*2048}"
    def wr(t):
        if t < 6:
            return f"ds_read_b128 v[{W[st]+t*4}:{W[st]+t*4+3}], v{V_B + kh*2 + (t&1)} offset:{bo + (t>>1)*4096}"
        return f"ds_read_b128 v[{W[st]+t*4}:{W[st]+t*4+3}], v{V_B6 + kh} offset:{bo}"
    r.append(wr(0))
    for mt in range(4):
        r.append(xr(mt))
    for t in range(1, 7):
        r.append(wr(t))
    return r

def c_phase(st, reads, commit=False):
    idx = 0
    for t in range(7):
        for mt in range(4):
            a = acc(t, mt)
            e(f"v_mfma_f32_16x16x32_bf16 v[{a}:{a+3}], v[{W[st]+t*4}:{W[st]+t*4+3}], v[{X[st]+mt*4}:{X[st]+mt*4+3}], v[{a}:{a+3}]")
            if idx < len(reads):
                e(reads[idx])
            idx += 1
    e("s_waitcnt lgkmcnt(0)")
    if commit:
        stamp_commit()

e("s_barrier")
stamp()
for r in c_reads(0, 0, 0, 0):
    e(r)
e(f"s_mov_b32 s{S_LOOP}, 0")
e("s_waitcnt lgkmcnt(0)")
stamp_commit()
lab("L_cloop")
for u in range(4):
    c_phase(0, c_reads(u % NA, u % NB, 1, 1))
    e("s_barrier")
    stamp()
    touch()
    if opts["pf"] and opts["p1"] < 16:
        pf_stage(True)
    c_phase(1, c_reads((u + 1) % NA, (u + 1) % NB, 0, 0), True)
e(f"s_add_u32 s{S_LOOP}, s{S_LOOP}, 1")
e(f"s_cmp_lt_u32 s{S_LOOP}, 4")
e("s_cbranch_scc1 L_cloop")
e("s_nop 7")
e("s_nop 3")
ci = 0
for mt in range(4):
    for T in range(3):
        c = CVT + (ci % 6) * 4
        ci += 1
        a, b = acc(2 * T, mt), acc(2 * T + 1, mt)
        e(f"v_cvt_pk_bf16_f32 v{c}, v{a}, v{a+1}")
        e(f"v_cvt_pk_bf16_f32 v{c+1}, v{a+2}, v{a+3}")
        e(f"v_cvt_pk_bf16_f32 v{c+2}, v{b}, v{b+1}")
        e(f"v_cvt_pk_bf16_f32 v{c+3}, v{b+2}, v{b+3}")
        e(f"ds_write_b128 v{V_EW}, v[{c}:{c+3}] offset:{mt*16*ERS + T*64}")
    c = CVT + (ci % 6) * 4
    ci += 1
    a = acc(6, mt)
    e(f"v_cvt_pk_bf16_f32 v{c}, v{a}, v{a+1}")
    e(f"v_cvt_pk_bf16_f32 v{c+1}, v{a+2}, v{a+3}")
    e(f"ds_write_b64 v{V_EW6}, v[{c}:{c+1}] offset:{mt*16*ERS + 192}")
e("s_mov_b32 s38, -1")
e("s_mov_b32 s39, 0x00ffffff")
e("s_waitcnt lgkmcnt(0)")
stamp_now()
e("s_mov_b64 exec, s[38:39]")
for it in range(16):
    e(f"ds_read_b128 v[{16+it*4}:{16+it*4+3}], v{V_ER} offset:{it*4*ERS}")
e(f"s_mov_b32 s{S_OOFF}, 0")
stf = ["", " nt", " sc1", " sc0 sc1", " sc0 sc1 nt"][opts["stflag"]]
for it in range(16):
    e(f"s_waitcnt lgkmcnt({15-it})")
    e(f"buffer_store_dwordx4 v[{16+it*4}:{16+it*4+3}], v{V_OUT}, s[{S_O}:{S_O+3}], s{S_OOFF} offen{stf}")
    if it < 15:
        e(f"s_add_u32 s{S_OOFF}, s{S_OOFF}, {4*7168}")
stamp_flush()
if opts["dbg"]:
    e("s_mov_b64 exec, -1")
    e("s_load_dwordx2 s[56:57], s[0:1], 32")
    e("s_waitcnt vmcnt(0) lgkmcnt(0)")
    e("s_memtime s[68:69]")
    e("s_memrealtime s[70:71]")
    e("s_waitcnt lgkmcnt(0)")
    e("s_sub_u32 s68, s68, s64")
    e("s_sub_u32 s70, s70, s66")
    e("s_mov_b32 s60, s56")
    e("s_and_b32 s61, s57, 0xffff")
    e("s_mov_b32 s62, 256")
    e("s_mov_b32 s63, 0x00020000")
    e(f"s_cmp_lg_u32 s{S_WAVE}, 0")
    e("s_cbranch_scc1 L_dbgdone")
    e("s_and_b32 s58, s2, 31")
    e("s_cmp_lg_u32 s58, 0")
    e("s_cbranch_scc1 L_dbgdone")
    e("s_lshr_b32 s58, s2, 5")
    e("s_lshl_b32 s58, s58, 3")
    e("v_mov_b32 v2, s68")
    e("v_mov_b32 v3, s70")
    e("v_mov_b32 v1, 0")
    e("s_mov_b64 exec, 1")
    e("buffer_store_dwordx2 v[2:3], v1, s[60:63], s58 offen")
    lab("L_dbgdone")
e("s_endpgm")

lab("L_producer")
V_STAMP[0] = 124
V_QOFF = 16
V_XOFF = 24
V_W = 32
V_LOFF = 34
V_LO0, V_LO1, V_HI0, V_HI1 = 36, 40, 44, 48
V_SEL = 52
V_PT = 60
V_OUTB = 76
V_T = 92
V_LH = 108
V_Q = 128

if opts["prio_p"]:
    e(f"s_setprio {opts['prio_p']}")
e(f"s_and_b32 s{S_PW}, s{S_WAVE}, 3")
e("v_lshrrev_b32 v1, 5, v0")
e("v_and_b32 v2, 31, v0")
e("v_cmp_gt_u32 vcc, 28, v2")
e("v_bfrev_b32 v6, 1")
e(f"s_mul_i32 s{S_TMP}, s{S_PW}, 229376")
e(f"s_lshl_b32 s{S_TMP2}, s{S_N0}, 2")
e(f"s_add_u32 s{S_TMP}, s{S_TMP}, s{S_TMP2}")
e("v_mul_u32_u24 v3, 114688, v1")
e("v_lshl_add_u32 v3, v2, 4, v3")
e(f"v_add_u32 v3, s{S_TMP}, v3")
e(f"v_cndmask_b32 v{V_QOFF}, v6, v3, vcc")
for kk in range(1, 8):
    e(f"v_add_u32 v{V_QOFF+kk}, {kk*14336}, v{V_QOFF}")
e(f"s_lshl_b32 s{S_TMP2}, s{S_N0}, 1")
e("v_lshlrev_b32 v3, 3, v2")
e(f"v_add_u32 v3, s{S_TMP2}, v3")
e(f"v_cndmask_b32 v{V_LOFF}, v6, v3, vcc")
e("v_lshrrev_b32 v3, 3, v0")
e("v_and_b32 v4, 7, v0")
e("v_lshrrev_b32 v5, 4, v0")
e("v_xor_b32 v4, v4, v5")
e("v_lshlrev_b32 v4, 4, v4")
e("v_lshl_add_u32 v3, v3, 11, v4")
e(f"s_lshl_b32 s{S_TMP}, s{S_PW}, 6")
e(f"s_add_u32 s{S_TMP}, s{S_TMP}, s{S_M0}")
e(f"s_lshl_b32 s{S_TMP}, s{S_TMP}, 11")
e(f"v_add_u32 v3, s{S_TMP}, v3")
e("v_xor_b32 v4, 64, v3")
for i in range(8):
    src = 4 if (i & 1) else 3
    e(f"v_add_u32 v{V_XOFF+i}, {i*16384 - (i&3)*1024}, v{src}")
e(f"s_lshl_b32 s{S_M0B}, s{S_PW}, 13")
S_QST = 50
if opts["ra"] or opts["rb"] or opts["rc"]:
    e(f"s_mul_i32 s{S_QST}, s{S_MT}, {opts['ra']}")
    e(f"s_lshr_b32 s{S_TMP}, s2, 3")
    e(f"s_and_b32 s{S_TMP}, s{S_TMP}, 3")
    e(f"s_mul_i32 s{S_TMP}, s{S_TMP}, {opts['rb']}")
    e(f"s_add_u32 s{S_QST}, s{S_QST}, s{S_TMP}")
    e(f"s_and_b32 s{S_TMP}, s2, 7")
    e(f"s_mul_i32 s{S_TMP}, s{S_TMP}, {opts['rc']}")
    e(f"s_add_u32 s{S_QST}, s{S_QST}, s{S_TMP}")
    e(f"s_and_b32 s{S_QST}, s{S_QST}, 15")
else:
    e(f"s_mov_b32 s{S_QST}, 0")
e(f"s_lshl_b32 s{S_XOFF}, s{S_QST}, 7")
e(f"s_mul_i32 s{S_QOFF}, s{S_QST}, {64*14336}")
e(f"s_lshl_b32 s{S_TMP}, s{S_PW}, 1")
e(f"v_add_u32 v3, s{S_TMP}, v1")
e("v_and_b32 v4, 7, v2")
e("v_lshlrev_b32 v5, 1, v2")
e("v_and_b32 v5, 7, v5")
e("v_cmp_gt_u32 s[38:39], 24, v2")
e("v_mov_b32 v7, 0x40000")
e("s_nop 0")
e("v_cndmask_b32 v4, v5, v4, s[38:39]")
e("v_xor_b32 v4, v3, v4")
e("v_lshlrev_b32 v4, 4, v4")
e("v_lshl_add_u32 v4, v2, 9, v4")
e(f"v_add_u32 v4, {B_BASE}, v4")
e(f"v_cndmask_b32 v{V_W}, v7, v4, vcc")
e(f"v_xor_b32 v4, 16, v{V_W}")
e(f"v_add_u32 v{V_W+1}, 256, v4")
e("s_waitcnt lgkmcnt(0)")
srd(S_L, 8, 8 * 3584 * 2)
srd(S_Q, 6, 1024 * 3584 * 4)
srd(S_X, 4, 2048 * 1024 * 2)
if opts["diag"]:
    e(f"v_mov_b32 v{V_STAMP[0]}, s{S_ST}")

vm = []
if opts["split8"]:
    e(f"s_cmp_ge_u32 s{S_WAVE}, 4")
    e("s_cselect_b64 vcc, -1, 0")
    for k in range(4):
        e(f"v_cndmask_b32 v{V_QOFF+k}, v{V_QOFF+k}, v{V_QOFF+4+k}, vcc")
        e(f"v_cndmask_b32 v{V_XOFF+k}, v{V_XOFF+k}, v{V_XOFF+4+k}, vcc")
if opts["utouch"]:
    e("v_lshlrev_b32 v127, 11, v0")


def q_items(stage):
    base = V_Q + (stage % PQ) * 32
    it = []
    NI = 4 if opts["split8"] else 8
    for kk in range(NI):
        ins = [f"buffer_load_dwordx4 v[{base+kk*4}:{base+kk*4+3}], v{V_QOFF+kk}, s[{S_Q}:{S_Q+3}], s{S_QOFF} offen"]
        if opts["noq"]:
            ins = [f"buffer_load_dword v{base+kk*4}, v{V_LOFF}, s[{S_L}:{S_L+3}], 0 offen"]
        if kk == NI - 1:
            ins.append(f"s_add_u32 s{S_QST}, s{S_QST}, 1")
            ins.append(f"s_and_b32 s{S_QST}, s{S_QST}, 15")
            ins.append(f"s_mul_i32 s{S_QOFF}, s{S_QST}, {64*14336}")
        it.append((("q", stage), ins, None))
    return it

def a_items(stage):
    slot = stage % NA
    it = []
    NI = 4 if opts["split8"] else 8
    for i in range(NI):
        pre = None
        if i % 4 == 0:
            pre = f"s_add_u32 m0, s{S_M0B}, {slot*A_SLOT + (i//4)*4096}"
        ins = [f"buffer_load_dwordx4 v{V_XOFF+i}, s[{S_X}:{S_X+3}], s{S_XOFF} offen offset:{(i&3)*1024} lds"]
        if opts["noa"]:
            ins = [f"buffer_load_dword v126, v{V_LOFF}, s[{S_L}:{S_L+3}], 0 offen"]
            if opts["utouch"] and i == 0:
                ins = [f"buffer_load_dword v126, v127, s[{S_X}:{S_X+3}], 0 offen"]
        if i == NI - 1:
            ins.append(f"s_add_u32 s{S_XOFF}, s{S_XOFF}, 128")
            ins.append(f"s_and_b32 s{S_XOFF}, s{S_XOFF}, 2047")
        it.append((("a", stage), ins, pre))
    return it

def emit_item(item, padded=False):
    tag, ins, pre = item
    if pre is not None and not padded:
        e(pre)
        e("s_nop 0")
    for s in ins:
        e(s)
    vm.append(tag)

def younger(tag):
    last = max(i for i, t in enumerate(vm) if t == tag)
    return len(vm) - 1 - last

for l in range(8):
    e(f"s_mov_b32 s{S_TMP}, {l*7168}")
    e(f"buffer_load_dwordx2 v[{V_T+2*l}:{V_T+2*l+1}], v{V_LOFF}, s[{S_L}:{S_L+3}], s{S_TMP} offen")
    vm.append("L")
for it in q_items(0): emit_item(it)
for it in a_items(0): emit_item(it)

e(f"s_waitcnt vmcnt({younger('L')})")
stamp_now()
for d in range(2):
    for hb in range(2):
        t0, t1, t2, t3 = [V_T + 2 * (4 * hb + k) + d for k in range(4)]
        lo = (V_LO0, V_LO1)[hb]
        hi = (V_HI0, V_HI1)[hb]
        for cc in range(2):
            sc = (S_C0, S_C1)[cc]
            col = 2 * d + cc
            e(f"v_perm_b32 v{V_PT}, v{t1}, v{t0}, s{sc}")
            e(f"v_perm_b32 v{V_PT+1}, v{t3}, v{t2}, s{sc}")
            e(f"v_perm_b32 v{lo+col}, v{V_PT+1}, v{V_PT}, s{S_C2}")
            e(f"v_perm_b32 v{hi+col}, v{V_PT+1}, v{V_PT}, s{S_C3}")

sched = {-1: [("q", 1), ("a", 1), ("q", 2)], 0: [("a", 2), ("q", 3), ("a", 3)],
         1: [("q", 4), ("a", 4), ("q", 5)], 2: [("a", 5), ("q", 6), ("q", 7)]}
for s in range(3, 15):
    g = []
    if s + 3 < NSTEP: g.append(("a", s + 3))
    if s + 5 < NSTEP: g.append(("q", s + 5))
    sched[s] = g

def p_body(s):
    st = s + 1
    base = V_Q + (st % PQ) * 32
    Q = lambda kk, i: base + kk * 4 + i
    bo = (st % NB) * B_SLOT
    valu = []
    for hb in range(2):
        for i in range(4):
            valu.append(f"v_lshl_or_b32 v{V_PT+hb*8+i*2}, v{Q(4*hb+1,i)}, 8, v{Q(4*hb,i)}")
            valu.append(f"v_lshl_or_b32 v{V_PT+hb*8+i*2+1}, v{Q(4*hb+3,i)}, 8, v{Q(4*hb+2,i)}")
    NP1 = len(valu)
    for hb in range(2):
        for i in range(4):
            valu.append(f"v_lshl_or_b32 v{V_SEL+hb*4+i}, v{V_PT+hb*8+i*2+1}, 16, v{V_PT+hb*8+i*2}")
    for i in range(4):
        for hb in range(2):
            valu.append(f"v_perm_b32 v{V_LH+i*4+hb*2}, v{V_LO1+i}, v{V_LO0+i}, v{V_SEL+hb*4+i}")
            valu.append(f"v_perm_b32 v{V_LH+i*4+hb*2+1}, v{V_HI1+i}, v{V_HI0+i}, v{V_SEL+hb*4+i}")
    for i in range(4):
        for hb in range(2):
            valu.append(f"v_perm_b32 v{V_OUTB+i*4+hb*2}, v{V_LH+i*4+hb*2+1}, v{V_LH+i*4+hb*2}, s{S_C0}")
            valu.append(f"v_perm_b32 v{V_OUTB+i*4+hb*2+1}, v{V_LH+i*4+hb*2+1}, v{V_LH+i*4+hb*2}, s{S_C1}")
        valu.append(f"ds_write_b128 v{V_W+(i>>1)}, v[{V_OUTB+i*4}:{V_OUTB+i*4+3}] offset:{bo + (i&1)*128}")
    if opts["pure"]:
        valu = ["s_nop 0"] * 17
    items = []
    for kind, stage in sched[s]:
        its = q_items(stage) if kind == "q" else a_items(stage)
        late = (kind == "q" and stage % PQ == st % PQ)
        for it in its:
            items.append((it, late))
    e(f"s_waitcnt vmcnt({younger(('q', st))})")
    n = len(items)
    nv = len(valu)
    pos = []
    for k in range(n):
        p = (k * nv) // n if n else 0
        if items[k][1]:
            p = max(p, NP1)
        pos.append(p)
    for k in range(1, n):
        pos[k] = max(pos[k], pos[k - 1])
    k = 0
    for vi in range(nv + 1):
        while k < n and pos[k] == vi:
            emit_item(items[k][0])
            k += 1
        if vi < nv:
            e(valu[vi])
    e(f"s_waitcnt vmcnt({younger(('a', st))}) lgkmcnt(0)")
    stamp_commit()
    if not opts["pure"]:
        e("s_barrier")
    stamp()

bodies = {}
for s in range(-1, 15):
    start = len(out)
    p_body(s)
    bodies[s] = out[start:]
    del out[start:]
import re
for s in range(3, 7):
    a, b = bodies[s], bodies[s + 4]
    assert len(a) == len(b)
    for i in range(len(a)):
        if a[i] != b[i]:
            ma = re.match(r"(\s*s_waitcnt vmcnt\()(\d+)(\).*)", a[i])
            mb = re.match(r"(\s*s_waitcnt vmcnt\()(\d+)(\).*)", b[i])
            assert ma and mb and ma.group(3) == mb.group(3), (a[i], b[i])
            a[i] = ma.group(1) + str(min(int(ma.group(2)), int(mb.group(2)))) + ma.group(3)
stamp()
for s in range(-1, 3):
    out.extend(bodies[s])
e(f"s_mov_b32 s{S_LOOP}, 0")
lab("L_ploop")
for s in range(3, 7):
    out.extend(bodies[s])
e(f"s_add_u32 s{S_LOOP}, s{S_LOOP}, 1")
e(f"s_cmp_lt_u32 s{S_LOOP}, 2")
e("s_cbranch_scc1 L_ploop")
for s in range(11, 15):
    out.extend(bodies[s])
if opts["diag"]:
    e("s_waitcnt lgkmcnt(0)")
    stamp_commit()
    stamp_flush()
lab("L_end")
e("s_endpgm")

out.append(f""".section .rodata,"a"
.p2align 6
.amdhsa_kernel {NAME}_kernel
  .amdhsa_next_free_vgpr 256
  .amdhsa_next_free_sgpr 80
  .amdhsa_accum_offset 256
  .amdhsa_group_segment_fixed_size 0
  .amdhsa_kernarg_size 48
  .amdhsa_user_sgpr_count 2
  .amdhsa_user_sgpr_kernarg_segment_ptr 1
  .amdhsa_system_sgpr_workgroup_id_x 1
.end_amdhsa_kernel""")

open(sys.argv[1], "w").write("\n".join(out) + "\n")
```

```python
import sys

NAME = "standalone__weight_only_int_squeezellm__prompt"
NA = 4
NB = 2
PQ = 4
NSTEP = 16
A_SLOT = 32768
B_BASE = NA * A_SLOT
B_SLOT = 14336
LDS = B_BASE + NB * B_SLOT

opts = dict(prio_c=0, prio_p=0, diag=0, sametile=0, touch=0, tdx=6, tdq=8, t0=2, stflag=0, pure=0, noq=0, noa=0, rot=0, split8=0, utouch=0, ra=0, rb=0, rc=0, pf=0, p0=2, p1=8, dbg=0, cold1=0, burst=0, bd=5, bx=1, st=0, ord=0)
for a in sys.argv[2:]:
    k, v = a.split("=")
    opts[k] = int(v)

out = []
def e(s):
    out.append("    " + s)
def lab(s):
    out.append(s + ":")

S_X, S_Q, S_L, S_O = 12, 16, 20, 24
S_MT, S_NT, S_M0, S_N0 = 28, 29, 30, 31
S_C0, S_C1, S_C2, S_C3 = 32, 33, 34, 35
S_WAVE = 36
S_PW = 37
S_MASK = 38
S_QOFF = 40
S_XOFF = 41
S_TMP = 42
S_TMP2 = 43
S_OOFF = 44
S_LOOP = 48
S_M0B = 49
S_TQ = 50
S_TX = 51
S_ST = 52
S_SI = 54
V_STAMP = [250]
def stamp():
    if not opts["diag"]: return
    e(f"s_memtime s[{S_ST}:{S_ST+1}]")
def stamp_commit():
    if not opts["diag"]: return
    e(f"v_cmp_eq_u32 vcc, s{S_SI}, v0")
    e(f"v_mov_b32 v{V_STAMP[0]+1}, s{S_ST}")
    e("s_nop 0")
    e(f"v_cndmask_b32 v{V_STAMP[0]}, v{V_STAMP[0]}, v{V_STAMP[0]+1}, vcc")
    e(f"s_add_u32 s{S_SI}, s{S_SI}, 1")
def stamp_now():
    if not opts["diag"]: return
    stamp()
    e("s_waitcnt lgkmcnt(0)")
    stamp_commit()
def stamp_flush():
    if not opts["diag"]: return
    e("s_mov_b64 exec, -1")
    e("s_load_dwordx2 s[56:57], s[0:1], 40")
    e("s_waitcnt vmcnt(0) lgkmcnt(0)")
    stamp_now()
    e("s_mov_b32 s60, s56")
    e("s_and_b32 s61, s57, 0xffff")
    e("s_mov_b32 s62, 0x100000")
    e("s_mov_b32 s63, 0x00020000")
    e(f"s_lshl_b32 s58, s2, 3")
    e(f"s_add_u32 s58, s58, s{S_WAVE}")
    e("s_lshl_b32 s58, s58, 8")
    e("v_lshlrev_b32 v1, 2, v0")
    e(f"buffer_store_dword v{V_STAMP[0]}, v1, s[60:63], s58 offen")

def srd(d, lo, nbytes):
    e(f"s_mov_b32 s{d}, s{lo}")
    e(f"s_and_b32 s{d+1}, s{lo+1}, 0xffff")
    e(f"s_mov_b32 s{d+2}, {nbytes}")
    e(f"s_mov_b32 s{d+3}, 0x00020000")

hdr = f"""; fused SqueezeLLM LUT dequant + bf16 MFMA GEMM, 256x112 tile per workgroup, 4 consumer + 4 producer waves
; @launch grid=(256,1,1) block=(512,1,1) lds={LDS}
.amdgcn_target "amdgcn-amd-amdhsa--gfx950"
.text
.globl {NAME}_kernel
.p2align 8
.type {NAME}_kernel,@function
{NAME}_kernel:"""
out.append(hdr)

e("s_cmp_ge_u32 s2, 256")
e("s_cbranch_scc1 L_end")
e("s_load_dwordx8 s[4:11], s[0:1], 0")
if opts["dbg"]:
    e("s_memtime s[64:65]")
    e("s_memrealtime s[66:67]")
if opts["diag"]:
    e(f"s_mov_b32 s{S_SI}, 1")
    stamp()
e(f"s_and_b32 s{S_MT}, s2, 7")
e(f"s_lshr_b32 s{S_NT}, s2, 3")
e(f"s_and_b32 s{S_NT}, s{S_NT}, 3")
e(f"s_lshl_b32 s{S_MT}, s{S_MT}, 2")
e(f"s_add_u32 s{S_NT}, s{S_NT}, s{S_MT}")
e(f"s_lshr_b32 s{S_MT}, s2, 5")
if opts["sametile"]:
    e(f"s_mov_b32 s{S_MT}, 0")
    e(f"s_and_b32 s{S_NT}, s2, 7")
e(f"s_lshl_b32 s{S_M0}, s{S_MT}, 8")
e(f"s_mul_i32 s{S_N0}, s{S_NT}, 112")
e("v_lshrrev_b32 v1, 6, v0")
e("v_and_b32 v0, 63, v0")
e(f"s_mov_b32 s{S_C0}, 0x05010400")
e(f"v_readfirstlane_b32 s{S_WAVE}, v1")
e(f"s_mov_b32 s{S_C1}, 0x07030602")
e(f"s_mov_b32 s{S_C2}, 0x05040100")
e(f"s_mov_b32 s{S_C3}, 0x07060302")
if opts["split8"]:
    e("s_branch L_producer")
e(f"s_cmp_ge_u32 s{S_WAVE}, 4")
e("s_cbranch_scc1 L_producer")

V_A = 2
V_B = 6
V_B6 = 10
V_OUT = 12
V_EW = 13
V_EW6 = 14
V_ER = 15
X = [16, 60]
W = [32, 76]
ACC = 128
CVT = 104
ERS = 240
def acc(t, mt):
    return ACC + (t * 4 + mt) * 4

if opts["pure"]:
    if opts["cold1"] >= 3:
        if opts["cold1"] == 3:
            e(f"s_cmp_lg_u32 s{S_WAVE}, 0")
            e("s_cbranch_scc1 L_end")
        e("s_load_dwordx2 s[72:73], s[0:1], 40")
        e("s_waitcnt lgkmcnt(0)")
        e("s_mov_b32 s76, s72")
        e("s_and_b32 s77, s73, 0xffff")
        e("s_mov_b32 s78, 0x10000000")
        e("s_mov_b32 s79, 0x00020000")
        e("s_lshl_b32 s74, s2, 18")
        e("s_add_u32 s74, s74, 0x1000000")
        e(f"s_lshl_b32 s75, s{S_WAVE}, 12")
        e("s_add_u32 s74, s74, s75")
        e("v_lshlrev_b32 v127, 4, v0")
        for k in range(16):
            e("buffer_load_dwordx4 v[120:123], v127, s[76:79], s74 offen")
            e("s_add_u32 s74, s74, 16384")
            e("s_sleep 18")
    e("s_endpgm")
if opts["prio_c"]:
    e(f"s_setprio {opts['prio_c']}")
e("v_and_b32 v110, 15, v0")
e("v_lshrrev_b32 v111, 4, v0")
e(f"s_lshl_b32 s{S_TMP}, s{S_WAVE}, 13")
e("v_lshrrev_b32 v1, 1, v110")
e("v_xor_b32 v1, v111, v1")
e("v_lshlrev_b32 v1, 4, v1")
e("v_lshl_add_u32 v104, v110, 7, v1")
e(f"v_add_u32 v{V_A}, s{S_TMP}, v104")
e(f"v_add_u32 v{V_A+1}, 0x10000, v{V_A}")
e(f"v_xor_b32 v{V_A+2}, 64, v{V_A}")
e(f"v_xor_b32 v{V_A+3}, 64, v{V_A+1}")
e(f"v_add_u32 v{V_B6}, {B_BASE + 96*128}, v104")
e(f"v_xor_b32 v{V_B6+1}, 64, v{V_B6}")
e("v_lshrrev_b32 v1, 2, v110")
e("v_and_b32 v105, 3, v110")
e("v_lshl_add_u32 v105, v1, 3, v105")
e("v_lshlrev_b32 v105, 7, v105")
e("v_lshlrev_b32 v1, 1, v1")
e("v_xor_b32 v1, v111, v1")
e("v_bfe_u32 v106, v110, 1, 1")
e("v_xor_b32 v1, v1, v106")
e("v_lshl_add_u32 v105, v1, 4, v105")
e(f"v_add_u32 v{V_B}, {B_BASE}, v105")
e(f"v_xor_b32 v1, 16, v{V_B}")
e(f"v_add_u32 v{V_B+1}, 512, v1")
e(f"v_xor_b32 v{V_B+2}, 64, v{V_B}")
e(f"v_xor_b32 v{V_B+3}, 64, v{V_B+1}")
e(f"s_lshl_b32 s{S_TMP}, s{S_WAVE}, 14")
e(f"v_mul_u32_u24 v1, {ERS}, v110")
e(f"v_add_u32 v1, s{S_TMP}, v1")
e(f"v_lshl_add_u32 v{V_EW}, v111, 4, v1")
e(f"v_lshl_add_u32 v{V_EW6}, v111, 3, v1")
e("v_mul_u32_u24 v1, 4682, v0")
e("v_lshrrev_b32 v1, 16, v1")
e("v_mul_u32_u24 v105, 14, v1")
e("v_sub_u32 v105, v0, v105")
e(f"v_mul_u32_u24 v106, {ERS}, v1")
e("v_lshl_add_u32 v106, v105, 4, v106")
e(f"v_add_u32 v{V_ER}, s{S_TMP}, v106")
e(f"s_lshl_b32 s{S_TMP}, s{S_WAVE}, 6")
e(f"s_add_u32 s{S_TMP}, s{S_TMP}, s{S_M0}")
e(f"v_add_u32 v1, s{S_TMP}, v1")
e("v_mul_u32_u24 v1, 7168, v1")
e(f"s_lshl_b32 s{S_TMP2}, s{S_N0}, 1")
e(f"v_add_u32 v1, s{S_TMP2}, v1")
e(f"v_lshl_add_u32 v{V_OUT}, v105, 4, v1")
for r in range(112):
    e(f"v_mov_b32 v{ACC+r}, 0")
e("s_waitcnt lgkmcnt(0)")
srd(S_O, 10, 2048 * 3584 * 2)
if opts["diag"]:
    e(f"v_mov_b32 v{V_STAMP[0]}, s{S_ST}")
S_T = 16
S_TOFF, S_TINC, S_TLIM = 45, 46, 47
V_TOFF, V_TD = 240, 241
def touch():
    if not opts["touch"]: return
    global tcount
    tcount += 1
    e(f"s_cmp_lt_u32 s{S_TOFF}, s{S_TLIM}")
    e(f"s_cbranch_scc0 L_tskip{tcount}")
    e(f"buffer_load_dword v{V_TD}, v{V_TOFF}, s[{S_T}:{S_T+3}], s{S_TOFF} offen")
    lab(f"L_tskip{tcount}")
    e(f"s_add_u32 s{S_TOFF}, s{S_TOFF}, s{S_TINC}")
tcount = 0
if opts["touch"]:
    two = opts["touch"] == 2
    qwave = 2 if two else 1
    e(f"s_lshr_b32 s{S_TMP}, s2, 3")
    e(f"s_and_b32 s{S_TMP2}, s2, 7")
    e(f"s_lshl_b32 s55, s{S_TMP}, 6")
    e(f"v_add_u32 v1, s55, v0")
    e("v_lshlrev_b32 v1, 11, v1")
    e(f"s_lshl_b32 s55, s{S_WAVE}, 6")
    e(f"v_add_u32 v242, s55, v1")
    if two:
        e("v_cmp_le_u32 vcc, 28, v0")
        e("v_subrev_u32 v1, 28, v0")
        e("s_nop 0")
        e("v_cndmask_b32 v243, v0, v1, vcc")
        e("v_cndmask_b32 v244, 0, 1, vcc")
        e("v_lshlrev_b32 v243, 6, v243")
        nl = 56
    else:
        e("v_cmp_le_u32 vcc, 14, v0")
        e("v_subrev_u32 v1, 14, v0")
        e("s_nop 0")
        e("v_cndmask_b32 v243, v0, v1, vcc")
        e("v_cndmask_b32 v244, 0, 1, vcc")
        e("v_lshlrev_b32 v243, 7, v243")
        nl = 28
    e(f"s_lshl_b32 s55, s{S_TMP}, 1")
    e(f"v_add_u32 v244, s55, v244")
    e("v_mul_u32_u24 v244, 14336, v244")
    e("v_add_u32 v243, v243, v244")
    e(f"s_mul_i32 s55, s{S_TMP2}, 1792")
    e("v_add_u32 v243, s55, v243")
    e("v_bfrev_b32 v245, 1")
    e(f"v_cmp_gt_u32 vcc, {nl}, v0")
    e("s_nop 1")
    e("v_cndmask_b32 v243, v245, v243, vcc")
    e(f"s_cmp_lt_u32 s{S_WAVE}, {qwave}")
    e("s_cselect_b64 vcc, -1, 0")
    e(f"s_cselect_b32 s{S_T}, s4, s6")
    e(f"s_cselect_b32 s{S_T+1}, s5, s7")
    e(f"s_mov_b32 s{S_T+2}, {1024*3584*4}")
    e(f"s_cselect_b32 s{S_T+2}, {2048*1024*2}, s{S_T+2}")
    e(f"s_mov_b32 s{S_TINC}, {64*14336}")
    e(f"s_cselect_b32 s{S_TINC}, 128, s{S_TINC}")
    e(f"s_mov_b32 s{S_TLIM}, {16*64*14336}")
    e(f"s_cselect_b32 s{S_TLIM}, {16*128}, s{S_TLIM}")
    e(f"s_mov_b32 s{S_TOFF}, {opts['t0']*64*14336}")
    e(f"s_cselect_b32 s{S_TOFF}, {opts['t0']*128}, s{S_TOFF}")
    e(f"s_and_b32 s{S_T+1}, s{S_T+1}, 0xffff")
    e(f"s_mov_b32 s{S_T+3}, 0x00020000")
    e(f"v_cndmask_b32 v{V_TOFF}, v243, v242, vcc")
    e(f"s_cmp_gt_u32 s{S_WAVE}, {qwave}")
    e(f"s_cselect_b32 s{S_TLIM}, 0, s{S_TLIM}")
    nmin = min(opts["tdx"], opts["tdq"]); nmax = max(opts["tdx"], opts["tdq"])
    for k in range(opts["t0"], nmin):
        touch()
    assert opts["tdq"] >= opts["tdx"]
    e(f"s_cmp_lg_u32 s{S_WAVE}, {qwave}")
    e("s_cbranch_scc1 L_tq_done")
    for k in range(nmin, nmax):
        touch()
    lab("L_tq_done")

S_PX, S_PQ = 16, 20
S_PQOFF, S_PXOFF, S_PST = 45, 46, 47
V_PQO, V_PXO, V_PD = 240, 241, 244
pcount = 0
def pf_stage(dyn):
    global pcount
    pcount += 1
    if dyn:
        e(f"s_cmp_lt_u32 s{S_PST}, 16")
        e(f"s_cbranch_scc0 L_pskip{pcount}")
    e(f"buffer_load_dwordx4 v[{V_PD}:{V_PD+3}], v{V_PQO}, s[{S_PQ}:{S_PQ+3}], s{S_PQOFF} offen")
    e(f"s_and_b32 s{S_TMP}, s{S_PST}, 3")
    e(f"s_cmp_lg_u32 s{S_TMP}, s{S_WAVE}")
    e(f"s_cbranch_scc1 L_pskip{pcount}")
    e(f"s_lshl_b32 s{S_PXOFF}, s{S_PST}, 7")
    e(f"buffer_load_dwordx4 v[{V_PD}:{V_PD+3}], v{V_PXO}, s[{S_PX}:{S_PX+3}], s{S_PXOFF} offen")
    lab(f"L_pskip{pcount}")
    e(f"s_add_u32 s{S_PQOFF}, s{S_PQOFF}, {64*14336}")
    e(f"s_add_u32 s{S_PST}, s{S_PST}, 1")
if opts["pf"]:
    srd(S_PX, 4, 2048 * 1024 * 2)
    srd(S_PQ, 6, 1024 * 3584 * 4)
    e(f"s_lshr_b32 s{S_TMP}, s2, 3")
    e(f"s_lshl_b32 s{S_TMP}, s{S_TMP}, 1")
    e(f"s_lshr_b32 s{S_TMP2}, s{S_WAVE}, 1")
    e(f"s_add_u32 s{S_TMP}, s{S_TMP}, s{S_TMP2}")
    e(f"s_mul_i32 s{S_TMP}, s{S_TMP}, 14336")
    e(f"s_and_b32 s{S_TMP2}, s2, 7")
    e(f"s_mul_i32 s{S_TMP2}, s{S_TMP2}, 1792")
    e(f"s_add_u32 s{S_TMP}, s{S_TMP}, s{S_TMP2}")
    e(f"s_and_b32 s{S_TMP2}, s{S_WAVE}, 1")
    e(f"s_mul_i32 s{S_TMP2}, s{S_TMP2}, 896")
    e(f"s_add_u32 s{S_TMP}, s{S_TMP}, s{S_TMP2}")
    e("v_lshlrev_b32 v1, 4, v0")
    e(f"v_add_u32 v1, s{S_TMP}, v1")
    e("v_bfrev_b32 v245, 1")
    e("v_cmp_gt_u32 vcc, 56, v0")
    e("s_nop 1")
    e(f"v_cndmask_b32 v{V_PQO}, v245, v1, vcc")
    e("v_lshrrev_b32 v1, 3, v0")
    e(f"s_lshl_b32 s{S_TMP}, s2, 3")
    e(f"v_add_u32 v1, s{S_TMP}, v1")
    e("v_lshlrev_b32 v1, 11, v1")
    e("v_and_b32 v245, 7, v0")
    e(f"v_lshl_add_u32 v{V_PXO}, v245, 4, v1")
    e(f"s_mov_b32 s{S_PST}, {opts['p0']}")
    e(f"s_mov_b32 s{S_PQOFF}, {opts['p0']*64*14336}")
    for k in range(opts["p0"], opts["p1"]):
        pf_stage(False)

S_BSTEP, S_BCNT, S_BQ, S_BX = 45, 46, 47, 55
bcount = 0
def burst_code():
    for r in range(8):
        for hf in range(2):
            e(f"buffer_load_dwordx4 v[{V_PD}:{V_PD+3}], v{V_PQO}, s[{S_PQ}:{S_PQ+3}], s{S_BQ} offen offset:{hf*896}")
        e(f"s_add_u32 s{S_BQ}, s{S_BQ}, 14336")
        if opts["bx"] == 1 and r % 2 == 1:
            e(f"buffer_load_dwordx4 v[{V_PD}:{V_PD+3}], v{V_PXO}, s[{S_PX}:{S_PX+3}], s{S_BX} offen")
            e(f"s_add_u32 s{S_BX}, s{S_BX}, 16384")
        if opts["bx"] == 2:
            for k in range(4):
                e(f"buffer_load_dwordx4 v[{V_PD}:{V_PD+3}], v{V_PXO}, s[{S_PX}:{S_PX+3}], s{S_BX} offen")
                e(f"s_add_u32 s{S_BX}, s{S_BX}, 16384")
def burst_check():
    global bcount
    if not opts["burst"]: return
    bcount += 1
    e(f"s_cmp_lg_u32 s{S_BCNT}, s{S_BSTEP}")
    e(f"s_cbranch_scc1 L_bskip{bcount}")
    e("s_getpc_b64 s[50:51]")
    e(f"s_add_u32 s50, s50, 12")
    e(f"s_addc_u32 s51, s51, 0")
    e("s_branch L_burst")
    lab(f"L_bskip{bcount}")
    e(f"s_add_u32 s{S_BCNT}, s{S_BCNT}, 1")
if opts["burst"]:
    srd(S_PX, 4, 2048 * 1024 * 2)
    srd(S_PQ, 6, 1024 * 3584 * 4)
    e(f"s_lshr_b32 s{S_TMP}, s2, 3")
    e(f"s_lshr_b32 s{S_BSTEP}, s{S_TMP}, 1")
    e(f"s_and_b32 s{S_TMP}, s{S_TMP}, 1")
    e(f"s_lshl_b32 s{S_BQ}, s{S_BSTEP}, 6")
    e(f"s_lshl_b32 s{S_TMP2}, s{S_TMP}, 5")
    e(f"s_add_u32 s{S_BQ}, s{S_BQ}, s{S_TMP2}")
    e(f"s_lshl_b32 s{S_TMP2}, s{S_WAVE}, 3")
    e(f"s_add_u32 s{S_BQ}, s{S_BQ}, s{S_TMP2}")
    e(f"s_mul_i32 s{S_BQ}, s{S_BQ}, 14336")
    e(f"s_and_b32 s{S_TMP2}, s2, 7")
    e(f"s_mul_i32 s{S_BX}, s{S_TMP2}, 1792")
    e(f"s_add_u32 s{S_BQ}, s{S_BQ}, s{S_BX}")
    if opts["bx"] == 2:
        e(f"s_lshl_b32 s{S_BX}, s{S_TMP}, 2")
        e(f"s_add_u32 s{S_BX}, s{S_BX}, s{S_WAVE}")
        e(f"s_lshl_b32 s{S_BX}, s{S_BX}, 19")
    else:
        e(f"s_lshl_b32 s{S_BX}, s{S_TMP2}, 1")
        e(f"s_add_u32 s{S_BX}, s{S_BX}, s{S_TMP}")
        e(f"s_lshl_b32 s{S_BX}, s{S_BX}, 2")
        e(f"s_add_u32 s{S_BX}, s{S_BX}, s{S_WAVE}")
        e(f"s_lshl_b32 s{S_BX}, s{S_BX}, 16")
    e(f"s_lshl_b32 s{S_TMP2}, s{S_BSTEP}, 7")
    e(f"s_add_u32 s{S_BX}, s{S_BX}, s{S_TMP2}")
    e("v_lshlrev_b32 v1, 4, v0")
    e("v_bfrev_b32 v245, 1")
    e("v_cmp_gt_u32 vcc, 56, v0")
    e("s_nop 1")
    e(f"v_cndmask_b32 v{V_PQO}, v245, v1, vcc")
    e("v_lshrrev_b32 v1, 3, v0")
    e("v_lshlrev_b32 v1, 11, v1")
    e("v_and_b32 v245, 7, v0")
    e(f"v_lshl_add_u32 v{V_PXO}, v245, 4, v1")
    e(f"s_cmp_lt_u32 s{S_BSTEP}, 2")
    e(f"s_cselect_b32 s{S_TMP}, 99, 0")
    e(f"s_sub_i32 s{S_BSTEP}, s{S_BSTEP}, {opts['bd']}")
    e(f"s_max_i32 s{S_BSTEP}, s{S_BSTEP}, 0")
    e(f"s_add_u32 s{S_BSTEP}, s{S_BSTEP}, s{S_TMP}")
    e(f"s_mov_b32 s{S_BCNT}, 0")
    if opts["burst"] >= 2:
        e(f"s_sleep {opts['burst']}")
    burst_check()

def c_reads(slotA, slotB, kh, st):
    r = []
    va = V_A + kh * 2 + (slotA >> 1)
    ao = (slotA & 1) * 32768
    bo = slotB * B_SLOT
    def xr(mt):
        return f"ds_read_b128 v[{X[st]+mt*4}:{X[st]+mt*4+3}], v{va} offset:{ao + mt*2048}"
    def wr(t):
        if t < 6:
            return f"ds_read_b128 v[{W[st]+t*4}:{W[st]+t*4+3}], v{V_B + kh*2 + (t&1)} offset:{bo + (t>>1)*4096}"
        return f"ds_read_b128 v[{W[st]+t*4}:{W[st]+t*4+3}], v{V_B6 + kh} offset:{bo}"
    r.append(wr(0))
    for mt in range(4):
        r.append(xr(mt))
    for t in range(1, 7):
        r.append(wr(t))
    return r

def c_phase(st, reads, commit=False):
    idx = 0
    for t in range(7):
        for mt in range(4):
            a = acc(t, mt)
            e(f"v_mfma_f32_16x16x32_bf16 v[{a}:{a+3}], v[{W[st]+t*4}:{W[st]+t*4+3}], v[{X[st]+mt*4}:{X[st]+mt*4+3}], v[{a}:{a+3}]")
            if idx < len(reads):
                e(reads[idx])
            idx += 1
    e("s_waitcnt lgkmcnt(0)")
    if commit:
        stamp_commit()

e("s_barrier")
stamp()
for r in c_reads(0, 0, 0, 0):
    e(r)
e(f"s_mov_b32 s{S_LOOP}, 0")
e("s_waitcnt lgkmcnt(0)")
stamp_commit()
lab("L_cloop")
for u in range(4):
    c_phase(0, c_reads(u % NA, u % NB, 1, 1))
    e("s_barrier")
    stamp()
    touch()
    burst_check()
    if opts["pf"] and opts["p1"] < 16:
        pf_stage(True)
    c_phase(1, c_reads((u + 1) % NA, (u + 1) % NB, 0, 0), True)
e(f"s_add_u32 s{S_LOOP}, s{S_LOOP}, 1")
e(f"s_cmp_lt_u32 s{S_LOOP}, 4")
e("s_cbranch_scc1 L_cloop")
e("s_nop 7")
e("s_nop 3")
ci = 0
for mt in range(4):
    for T in range(3):
        c = CVT + (ci % 6) * 4
        ci += 1
        a, b = acc(2 * T, mt), acc(2 * T + 1, mt)
        e(f"v_cvt_pk_bf16_f32 v{c}, v{a}, v{a+1}")
        e(f"v_cvt_pk_bf16_f32 v{c+1}, v{a+2}, v{a+3}")
        e(f"v_cvt_pk_bf16_f32 v{c+2}, v{b}, v{b+1}")
        e(f"v_cvt_pk_bf16_f32 v{c+3}, v{b+2}, v{b+3}")
        e(f"ds_write_b128 v{V_EW}, v[{c}:{c+3}] offset:{mt*16*ERS + T*64}")
    c = CVT + (ci % 6) * 4
    ci += 1
    a = acc(6, mt)
    e(f"v_cvt_pk_bf16_f32 v{c}, v{a}, v{a+1}")
    e(f"v_cvt_pk_bf16_f32 v{c+1}, v{a+2}, v{a+3}")
    e(f"ds_write_b64 v{V_EW6}, v[{c}:{c+1}] offset:{mt*16*ERS + 192}")
e("s_mov_b32 s38, -1")
e("s_mov_b32 s39, 0x00ffffff")
e("s_waitcnt lgkmcnt(0)")
stamp_now()
e("s_mov_b64 exec, s[38:39]")
for it in range(16):
    e(f"ds_read_b128 v[{16+it*4}:{16+it*4+3}], v{V_ER} offset:{it*4*ERS}")
e(f"s_mov_b32 s{S_OOFF}, 0")
stf = ["", " nt", " sc1", " sc0 sc1", " sc0 sc1 nt"][opts["stflag"]]
for it in range(16):
    e(f"s_waitcnt lgkmcnt({15-it})")
    e(f"buffer_store_dwordx4 v[{16+it*4}:{16+it*4+3}], v{V_OUT}, s[{S_O}:{S_O+3}], s{S_OOFF} offen{stf}")
    if it < 15:
        e(f"s_add_u32 s{S_OOFF}, s{S_OOFF}, {4*7168}")
stamp_flush()
if opts["dbg"]:
    e("s_mov_b64 exec, -1")
    e("s_load_dwordx2 s[56:57], s[0:1], 32")
    e("s_waitcnt vmcnt(0) lgkmcnt(0)")
    e("s_memtime s[68:69]")
    e("s_memrealtime s[70:71]")
    e("s_waitcnt lgkmcnt(0)")
    e("s_sub_u32 s68, s68, s64")
    e("s_sub_u32 s70, s70, s66")
    e("s_mov_b32 s60, s56")
    e("s_and_b32 s61, s57, 0xffff")
    e("s_mov_b32 s62, 256")
    e("s_mov_b32 s63, 0x00020000")
    e(f"s_cmp_lg_u32 s{S_WAVE}, 0")
    e("s_cbranch_scc1 L_dbgdone")
    e("s_and_b32 s58, s2, 31")
    e("s_cmp_lg_u32 s58, 0")
    e("s_cbranch_scc1 L_dbgdone")
    e("s_lshr_b32 s58, s2, 5")
    e("s_lshl_b32 s58, s58, 3")
    e("v_mov_b32 v2, s68")
    e("v_mov_b32 v3, s70")
    e("v_mov_b32 v1, 0")
    e("s_mov_b64 exec, 1")
    e("buffer_store_dwordx2 v[2:3], v1, s[60:63], s58 offen")
    lab("L_dbgdone")
e("s_endpgm")
if opts["burst"]:
    lab("L_burst")
    burst_code()
    e("s_setpc_b64 s[50:51]")

lab("L_producer")
V_STAMP[0] = 124
V_QOFF = 16
V_XOFF = 24
V_W = 32
V_LOFF = 34
V_LO0, V_LO1, V_HI0, V_HI1 = 36, 40, 44, 48
V_SEL = 52
V_PT = 60
V_OUTB = 76
V_T = 92
V_LH = 108
V_Q = 128

if opts["prio_p"]:
    e(f"s_setprio {opts['prio_p']}")
e(f"s_and_b32 s{S_PW}, s{S_WAVE}, 3")
e("v_lshrrev_b32 v1, 5, v0")
e("v_and_b32 v2, 31, v0")
e("v_cmp_gt_u32 vcc, 28, v2")
e("v_bfrev_b32 v6, 1")
e(f"s_mul_i32 s{S_TMP}, s{S_PW}, 229376")
e(f"s_lshl_b32 s{S_TMP2}, s{S_N0}, 2")
e(f"s_add_u32 s{S_TMP}, s{S_TMP}, s{S_TMP2}")
e("v_mul_u32_u24 v3, 114688, v1")
e("v_lshl_add_u32 v3, v2, 4, v3")
e(f"v_add_u32 v3, s{S_TMP}, v3")
e(f"v_cndmask_b32 v{V_QOFF}, v6, v3, vcc")
for kk in range(1, 8):
    e(f"v_add_u32 v{V_QOFF+kk}, {kk*14336}, v{V_QOFF}")
e(f"s_lshl_b32 s{S_TMP2}, s{S_N0}, 1")
e("v_lshlrev_b32 v3, 3, v2")
e(f"v_add_u32 v3, s{S_TMP2}, v3")
e(f"v_cndmask_b32 v{V_LOFF}, v6, v3, vcc")
e("v_lshrrev_b32 v3, 3, v0")
e("v_and_b32 v4, 7, v0")
e("v_lshrrev_b32 v5, 4, v0")
e("v_xor_b32 v4, v4, v5")
e("v_lshlrev_b32 v4, 4, v4")
e("v_lshl_add_u32 v3, v3, 11, v4")
e(f"s_lshl_b32 s{S_TMP}, s{S_PW}, 6")
e(f"s_add_u32 s{S_TMP}, s{S_TMP}, s{S_M0}")
e(f"s_lshl_b32 s{S_TMP}, s{S_TMP}, 11")
e(f"v_add_u32 v3, s{S_TMP}, v3")
e("v_xor_b32 v4, 64, v3")
for i in range(8):
    src = 4 if (i & 1) else 3
    e(f"v_add_u32 v{V_XOFF+i}, {i*16384 - (i&3)*1024}, v{src}")
e(f"s_lshl_b32 s{S_M0B}, s{S_PW}, 13")
S_QST = 50
if opts["ra"] or opts["rb"] or opts["rc"]:
    e(f"s_mul_i32 s{S_QST}, s{S_MT}, {opts['ra']}")
    e(f"s_lshr_b32 s{S_TMP}, s2, 3")
    e(f"s_and_b32 s{S_TMP}, s{S_TMP}, 3")
    e(f"s_mul_i32 s{S_TMP}, s{S_TMP}, {opts['rb']}")
    e(f"s_add_u32 s{S_QST}, s{S_QST}, s{S_TMP}")
    e(f"s_and_b32 s{S_TMP}, s2, 7")
    e(f"s_mul_i32 s{S_TMP}, s{S_TMP}, {opts['rc']}")
    e(f"s_add_u32 s{S_QST}, s{S_QST}, s{S_TMP}")
    e(f"s_and_b32 s{S_QST}, s{S_QST}, 15")
else:
    e(f"s_mov_b32 s{S_QST}, 0")
e(f"s_lshl_b32 s{S_XOFF}, s{S_QST}, 7")
e(f"s_mul_i32 s{S_QOFF}, s{S_QST}, {64*14336}")
e(f"s_lshl_b32 s{S_TMP}, s{S_PW}, 1")
e(f"v_add_u32 v3, s{S_TMP}, v1")
e("v_and_b32 v4, 7, v2")
e("v_lshlrev_b32 v5, 1, v2")
e("v_and_b32 v5, 7, v5")
e("v_cmp_gt_u32 s[38:39], 24, v2")
e("v_mov_b32 v7, 0x40000")
e("s_nop 0")
e("v_cndmask_b32 v4, v5, v4, s[38:39]")
e("v_xor_b32 v4, v3, v4")
e("v_lshlrev_b32 v4, 4, v4")
e("v_lshl_add_u32 v4, v2, 9, v4")
e(f"v_add_u32 v4, {B_BASE}, v4")
e(f"v_cndmask_b32 v{V_W}, v7, v4, vcc")
e(f"v_xor_b32 v4, 16, v{V_W}")
e(f"v_add_u32 v{V_W+1}, 256, v4")
e("s_waitcnt lgkmcnt(0)")
srd(S_L, 8, 8 * 3584 * 2)
srd(S_Q, 6, 1024 * 3584 * 4)
srd(S_X, 4, 2048 * 1024 * 2)
if opts["diag"]:
    e(f"v_mov_b32 v{V_STAMP[0]}, s{S_ST}")

vm = []
if opts["cold1"] in (1, 2):
    e("s_load_dwordx2 s[72:73], s[0:1], 40")
    e("s_waitcnt lgkmcnt(0)")
    e("s_mov_b32 s76, s72")
    e("s_and_b32 s77, s73, 0xffff")
    e("s_mov_b32 s78, 0x10000000")
    e("s_mov_b32 s79, 0x00020000")
    e("s_lshl_b32 s74, s2, 18")
    e("s_add_u32 s74, s74, 0x1000000")
    e(f"s_lshl_b32 s75, s{S_PW}, 12")
    e("s_add_u32 s74, s74, s75")
    e("v_lshlrev_b32 v127, 4, v0")

if opts["split8"]:
    e(f"s_cmp_ge_u32 s{S_WAVE}, 4")
    e("s_cselect_b64 vcc, -1, 0")
    for k in range(4):
        e(f"v_cndmask_b32 v{V_QOFF+k}, v{V_QOFF+k}, v{V_QOFF+4+k}, vcc")
        e(f"v_cndmask_b32 v{V_XOFF+k}, v{V_XOFF+k}, v{V_XOFF+4+k}, vcc")
if opts["utouch"]:
    e("v_lshlrev_b32 v127, 11, v0")


def q_items(stage):
    base = V_Q + (stage % PQ) * 32
    it = []
    NI = 4 if opts["split8"] else 8
    for kk in range(NI):
        ins = [f"buffer_load_dwordx4 v[{base+kk*4}:{base+kk*4+3}], v{V_QOFF+kk}, s[{S_Q}:{S_Q+3}], s{S_QOFF} offen"]
        if opts["noq"]:
            ins = [f"buffer_load_dword v{base+kk*4}, v{V_LOFF}, s[{S_L}:{S_L+3}], 0 offen"]
        if kk == NI - 1:
            ins.append(f"s_add_u32 s{S_QST}, s{S_QST}, 1")
            ins.append(f"s_and_b32 s{S_QST}, s{S_QST}, 15")
            ins.append(f"s_mul_i32 s{S_QOFF}, s{S_QST}, {64*14336}")
        it.append((("q", stage), ins, None))
    return it

def a_items(stage):
    slot = stage % NA
    it = []
    NI = 4 if opts["split8"] else 8
    for i in range(NI):
        pre = None
        if i % 4 == 0:
            pre = f"s_add_u32 m0, s{S_M0B}, {slot*A_SLOT + (i//4)*4096}"
        ins = [f"buffer_load_dwordx4 v{V_XOFF+i}, s[{S_X}:{S_X+3}], s{S_XOFF} offen offset:{(i&3)*1024} lds"]
        if opts["noa"]:
            ins = [f"buffer_load_dword v126, v{V_LOFF}, s[{S_L}:{S_L+3}], 0 offen"]
            if opts["utouch"] and i == 0:
                ins = [f"buffer_load_dword v126, v127, s[{S_X}:{S_X+3}], 0 offen"]
        if i == NI - 1:
            ins.append(f"s_add_u32 s{S_XOFF}, s{S_XOFF}, 128")
            ins.append(f"s_and_b32 s{S_XOFF}, s{S_XOFF}, 2047")
        it.append((("a", stage), ins, pre))
    return it

def emit_item(item, padded=False):
    tag, ins, pre = item
    if pre is not None and not padded:
        e(pre)
        e("s_nop 0")
    for s in ins:
        e(s)
    vm.append(tag)

def younger(tag):
    last = max(i for i, t in enumerate(vm) if t == tag)
    return len(vm) - 1 - last

for l in range(8):
    e(f"s_mov_b32 s{S_TMP}, {l*7168}")
    e(f"buffer_load_dwordx2 v[{V_T+2*l}:{V_T+2*l+1}], v{V_LOFF}, s[{S_L}:{S_L+3}], s{S_TMP} offen")
    vm.append("L")
for it in q_items(0): emit_item(it)
for it in a_items(0): emit_item(it)
if opts["st"] >= 1:
    for it in q_items(1): emit_item(it)
    for it in a_items(1): emit_item(it)

e(f"s_waitcnt vmcnt({younger('L')})")
stamp_now()
for d in range(2):
    for hb in range(2):
        t0, t1, t2, t3 = [V_T + 2 * (4 * hb + k) + d for k in range(4)]
        lo = (V_LO0, V_LO1)[hb]
        hi = (V_HI0, V_HI1)[hb]
        for cc in range(2):
            sc = (S_C0, S_C1)[cc]
            col = 2 * d + cc
            e(f"v_perm_b32 v{V_PT}, v{t1}, v{t0}, s{sc}")
            e(f"v_perm_b32 v{V_PT+1}, v{t3}, v{t2}, s{sc}")
            e(f"v_perm_b32 v{lo+col}, v{V_PT+1}, v{V_PT}, s{S_C2}")
            e(f"v_perm_b32 v{hi+col}, v{V_PT+1}, v{V_PT}, s{S_C3}")

sched = {-1: [("q", 1), ("a", 1), ("q", 2)], 0: [("a", 2), ("q", 3), ("a", 3)]}
if opts["st"] == 1:
    sched = {-1: [], 0: [("q", 2), ("a", 2), ("q", 3), ("a", 3)]}

for s in range(1, 15):
    g = []
    if s + 3 < NSTEP:
        g.append(("a", s + 3))
        g.append(("q", s + 3))
    sched[s] = g

def p_body(s):
    st = s + 1
    base = V_Q + (st % PQ) * 32
    Q = lambda kk, i: base + kk * 4 + i
    bo = (st % NB) * B_SLOT
    valu = []
    for hb in range(2):
        for i in range(4):
            valu.append(f"v_lshl_or_b32 v{V_PT+hb*8+i*2}, v{Q(4*hb+1,i)}, 8, v{Q(4*hb,i)}")
            valu.append(f"v_lshl_or_b32 v{V_PT+hb*8+i*2+1}, v{Q(4*hb+3,i)}, 8, v{Q(4*hb+2,i)}")
    NP1 = len(valu)
    for hb in range(2):
        for i in range(4):
            valu.append(f"v_lshl_or_b32 v{V_SEL+hb*4+i}, v{V_PT+hb*8+i*2+1}, 16, v{V_PT+hb*8+i*2}")
    for i in range(4):
        for hb in range(2):
            valu.append(f"v_perm_b32 v{V_LH+i*4+hb*2}, v{V_LO1+i}, v{V_LO0+i}, v{V_SEL+hb*4+i}")
            valu.append(f"v_perm_b32 v{V_LH+i*4+hb*2+1}, v{V_HI1+i}, v{V_HI0+i}, v{V_SEL+hb*4+i}")
    for i in range(4):
        for hb in range(2):
            valu.append(f"v_perm_b32 v{V_OUTB+i*4+hb*2}, v{V_LH+i*4+hb*2+1}, v{V_LH+i*4+hb*2}, s{S_C0}")
            valu.append(f"v_perm_b32 v{V_OUTB+i*4+hb*2+1}, v{V_LH+i*4+hb*2+1}, v{V_LH+i*4+hb*2}, s{S_C1}")
        valu.append(f"ds_write_b128 v{V_W+(i>>1)}, v[{V_OUTB+i*4}:{V_OUTB+i*4+3}] offset:{bo + (i&1)*128}")
    if opts["pure"]:
        valu = ["s_nop 0"] * 17
    items = []
    for kind, stage in sched[s]:
        its = q_items(stage) if kind == "q" else a_items(stage)
        late = (kind == "q" and stage % PQ == st % PQ)
        for it in its:
            items.append((it, late))
    e(f"s_waitcnt vmcnt({younger(('q', st))})")
    if opts["cold1"] in (1, 2):
        if opts["cold1"] == 1:
            e(f"s_cmp_lg_u32 s{S_PW}, 0")
            e(f"s_cselect_b32 s75, 0x20000000, s74")
        else:
            e("s_mov_b32 s75, s74")
        e("buffer_load_dwordx4 v[120:123], v127, s[76:79], s75 offen")
        e("s_add_u32 s74, s74, 16384")
        vm.append("cold")
    n = len(items)
    nv = len(valu)
    pos = []
    if opts["ord"] == 1:
        ni = max(n - 8, 0)
        for k in range(n):
            p = (k * nv) // ni if k < ni else nv
            if items[k][1]:
                p = max(p, NP1)
            pos.append(p)
    elif opts["ord"] == 2:
        ni = (2 * n) // 3
        for k in range(n):
            p = (k * nv) // ni if k < ni else nv
            if items[k][1]:
                p = max(p, NP1)
            pos.append(p)
    else:
      for k in range(n):
        p = (k * nv) // n if n else 0
        if items[k][1]:
            p = max(p, NP1)
        pos.append(p)
    for k in range(1, n):
        pos[k] = max(pos[k], pos[k - 1])
    k = 0
    for vi in range(nv + 1):
        while k < n and pos[k] == vi:
            emit_item(items[k][0])
            k += 1
        if vi < nv:
            e(valu[vi])
    e(f"s_waitcnt vmcnt({younger(('a', st))}) lgkmcnt(0)")
    stamp_commit()
    if not opts["pure"]:
        e("s_barrier")
    stamp()

bodies = {}
for s in range(-1, 15):
    start = len(out)
    p_body(s)
    bodies[s] = out[start:]
    del out[start:]
import re
for s in range(1, 5):
  for rep in (4, 8):
    a, b = bodies[s], bodies[s + rep]
    assert len(a) == len(b)
    for i in range(len(a)):
        if a[i] != b[i]:
            ma = re.match(r"(\s*s_waitcnt vmcnt\()(\d+)(\).*)", a[i])
            mb = re.match(r"(\s*s_waitcnt vmcnt\()(\d+)(\).*)", b[i])
            assert ma and mb and ma.group(3) == mb.group(3), (a[i], b[i])
            a[i] = ma.group(1) + str(min(int(ma.group(2)), int(mb.group(2)))) + ma.group(3)
stamp()
for s in range(-1, 1):
    out.extend(bodies[s])
e(f"s_mov_b32 s{S_LOOP}, 0")
lab("L_ploop")
for s in range(1, 5):
    out.extend(bodies[s])
e(f"s_add_u32 s{S_LOOP}, s{S_LOOP}, 1")
e(f"s_cmp_lt_u32 s{S_LOOP}, 3")
e("s_cbranch_scc1 L_ploop")
for s in range(13, 15):
    out.extend(bodies[s])
if opts["diag"]:
    e("s_waitcnt lgkmcnt(0)")
    stamp_commit()
    stamp_flush()
lab("L_end")
e("s_endpgm")

out.append(f""".section .rodata,"a"
.p2align 6
.amdhsa_kernel {NAME}_kernel
  .amdhsa_next_free_vgpr 256
  .amdhsa_next_free_sgpr 80
  .amdhsa_accum_offset 256
  .amdhsa_group_segment_fixed_size 0
  .amdhsa_kernarg_size 48
  .amdhsa_user_sgpr_count 2
  .amdhsa_user_sgpr_kernarg_segment_ptr 1
  .amdhsa_system_sgpr_workgroup_id_x 1
.end_amdhsa_kernel""")

open(sys.argv[1], "w").write("\n".join(out) + "\n")
```

```python
import sys

NAME = "standalone__weight_only_int_squeezellm__prompt"
NA = 4
NB = 2
PQ = 4
NSTEP = 16
A_SLOT = 32768
B_BASE = NA * A_SLOT
B_SLOT = 14336
LDS = B_BASE + NB * B_SLOT

opts = dict(prio_c=0, prio_p=0, diag=0, sametile=0, touch=0, tdx=6, tdq=8, t0=2, stflag=0, pure=0, noq=0, noa=0, rot=0, split8=0, utouch=0, ra=0, rb=0, rc=0, pf=0, p0=2, p1=8, dbg=0, cold1=0, burst=0, bd=5, bx=1, st=0, ord=0, cpf=0)
for a in sys.argv[2:]:
    k, v = a.split("=")
    opts[k] = int(v)

out = []
def e(s):
    out.append("    " + s)
def lab(s):
    out.append(s + ":")

S_X, S_Q, S_L, S_O = 12, 16, 20, 24
S_MT, S_NT, S_M0, S_N0 = 28, 29, 30, 31
S_C0, S_C1, S_C2, S_C3 = 32, 33, 34, 35
S_WAVE = 36
S_PW = 37
S_MASK = 38
S_QOFF = 40
S_XOFF = 41
S_TMP = 42
S_TMP2 = 43
S_OOFF = 44
S_LOOP = 48
S_M0B = 49
S_TQ = 50
S_TX = 51
S_ST = 52
S_SI = 54
V_STAMP = [250]
def stamp():
    if not opts["diag"]: return
    e(f"s_memtime s[{S_ST}:{S_ST+1}]")
def stamp_commit():
    if not opts["diag"]: return
    e(f"v_cmp_eq_u32 vcc, s{S_SI}, v0")
    e(f"v_mov_b32 v{V_STAMP[0]+1}, s{S_ST}")
    e("s_nop 0")
    e(f"v_cndmask_b32 v{V_STAMP[0]}, v{V_STAMP[0]}, v{V_STAMP[0]+1}, vcc")
    e(f"s_add_u32 s{S_SI}, s{S_SI}, 1")
def stamp_now():
    if not opts["diag"]: return
    stamp()
    e("s_waitcnt lgkmcnt(0)")
    stamp_commit()
def stamp_flush():
    if not opts["diag"]: return
    e("s_mov_b64 exec, -1")
    e("s_load_dwordx2 s[56:57], s[0:1], 40")
    e("s_waitcnt vmcnt(0) lgkmcnt(0)")
    stamp_now()
    e("s_mov_b32 s60, s56")
    e("s_and_b32 s61, s57, 0xffff")
    e("s_mov_b32 s62, 0x100000")
    e("s_mov_b32 s63, 0x00020000")
    e(f"s_lshl_b32 s58, s2, 3")
    e(f"s_add_u32 s58, s58, s{S_WAVE}")
    e("s_lshl_b32 s58, s58, 8")
    e("v_lshlrev_b32 v1, 2, v0")
    e(f"buffer_store_dword v{V_STAMP[0]}, v1, s[60:63], s58 offen")

def srd(d, lo, nbytes):
    e(f"s_mov_b32 s{d}, s{lo}")
    e(f"s_and_b32 s{d+1}, s{lo+1}, 0xffff")
    e(f"s_mov_b32 s{d+2}, {nbytes}")
    e(f"s_mov_b32 s{d+3}, 0x00020000")

hdr = f"""; fused SqueezeLLM LUT dequant + bf16 MFMA GEMM, 256x112 tile per workgroup, 4 consumer + 4 producer waves
; @launch grid=(256,1,1) block=(512,1,1) lds={LDS}
.amdgcn_target "amdgcn-amd-amdhsa--gfx950"
.text
.globl {NAME}_kernel
.p2align 8
.type {NAME}_kernel,@function
{NAME}_kernel:"""
out.append(hdr)

e("s_cmp_ge_u32 s2, 256")
e("s_cbranch_scc1 L_end")
e("s_load_dwordx8 s[4:11], s[0:1], 0")
if opts["dbg"]:
    e("s_memtime s[64:65]")
    e("s_memrealtime s[66:67]")
if opts["diag"]:
    e(f"s_mov_b32 s{S_SI}, 1")
    stamp()
e(f"s_and_b32 s{S_MT}, s2, 7")
e(f"s_lshr_b32 s{S_NT}, s2, 3")
e(f"s_and_b32 s{S_NT}, s{S_NT}, 3")
e(f"s_lshl_b32 s{S_MT}, s{S_MT}, 2")
e(f"s_add_u32 s{S_NT}, s{S_NT}, s{S_MT}")
e(f"s_lshr_b32 s{S_MT}, s2, 5")
if opts["sametile"]:
    e(f"s_mov_b32 s{S_MT}, 0")
    e(f"s_and_b32 s{S_NT}, s2, 7")
e(f"s_lshl_b32 s{S_M0}, s{S_MT}, 8")
e(f"s_mul_i32 s{S_N0}, s{S_NT}, 112")
e("v_lshrrev_b32 v1, 6, v0")
e("v_and_b32 v0, 63, v0")
e(f"s_mov_b32 s{S_C0}, 0x05010400")
e(f"v_readfirstlane_b32 s{S_WAVE}, v1")
e(f"s_mov_b32 s{S_C1}, 0x07030602")
e(f"s_mov_b32 s{S_C2}, 0x05040100")
e(f"s_mov_b32 s{S_C3}, 0x07060302")
if opts["split8"]:
    e("s_branch L_producer")
e(f"s_cmp_ge_u32 s{S_WAVE}, 4")
e("s_cbranch_scc1 L_producer")

V_A = 2
V_B = 6
V_B6 = 10
V_OUT = 12
V_EW = 13
V_EW6 = 14
V_ER = 15
X = [16, 60]
W = [32, 76]
ACC = 128
CVT = 104
ERS = 240
def acc(t, mt):
    return ACC + (t * 4 + mt) * 4

if opts["pure"]:
    if opts["cold1"] >= 3:
        if opts["cold1"] == 3:
            e(f"s_cmp_lg_u32 s{S_WAVE}, 0")
            e("s_cbranch_scc1 L_end")
        e("s_load_dwordx2 s[72:73], s[0:1], 40")
        e("s_waitcnt lgkmcnt(0)")
        e("s_mov_b32 s76, s72")
        e("s_and_b32 s77, s73, 0xffff")
        e("s_mov_b32 s78, 0x10000000")
        e("s_mov_b32 s79, 0x00020000")
        e("s_lshl_b32 s74, s2, 18")
        e("s_add_u32 s74, s74, 0x1000000")
        e(f"s_lshl_b32 s75, s{S_WAVE}, 12")
        e("s_add_u32 s74, s74, s75")
        e("v_lshlrev_b32 v127, 4, v0")
        for k in range(16):
            e("buffer_load_dwordx4 v[120:123], v127, s[76:79], s74 offen")
            e("s_add_u32 s74, s74, 16384")
            e("s_sleep 18")
    e("s_endpgm")
if opts["cpf"]:
    e("s_getpc_b64 s[64:65]")
    lab("L_pc")
    e(f"s_sub_u32 s64, s64, L_pc-{NAME}_kernel")
    e("s_subb_u32 s65, s65, 0")
    e(f"s_lshl_b32 s66, s{S_WAVE}, 10")
    e("v_lshlrev_b32 v2, 4, v0")
    e("v_add_u32 v2, s66, v2")
    for k in range(opts["cpf"]):
        e(f"v_min_u32 v3, L_codeend-{NAME}_kernel-16, v2")
        e(f"global_load_dwordx4 v[244:247], v3, s[64:65]")
        e("v_add_u32 v2, 0x1000, v2")
if opts["prio_c"]:
    e(f"s_setprio {opts['prio_c']}")
e("v_and_b32 v110, 15, v0")
e("v_lshrrev_b32 v111, 4, v0")
e(f"s_lshl_b32 s{S_TMP}, s{S_WAVE}, 13")
e("v_lshrrev_b32 v1, 1, v110")
e("v_xor_b32 v1, v111, v1")
e("v_lshlrev_b32 v1, 4, v1")
e("v_lshl_add_u32 v104, v110, 7, v1")
e(f"v_add_u32 v{V_A}, s{S_TMP}, v104")
e(f"v_add_u32 v{V_A+1}, 0x10000, v{V_A}")
e(f"v_xor_b32 v{V_A+2}, 64, v{V_A}")
e(f"v_xor_b32 v{V_A+3}, 64, v{V_A+1}")
e(f"v_add_u32 v{V_B6}, {B_BASE + 96*128}, v104")
e(f"v_xor_b32 v{V_B6+1}, 64, v{V_B6}")
e("v_lshrrev_b32 v1, 2, v110")
e("v_and_b32 v105, 3, v110")
e("v_lshl_add_u32 v105, v1, 3, v105")
e("v_lshlrev_b32 v105, 7, v105")
e("v_lshlrev_b32 v1, 1, v1")
e("v_xor_b32 v1, v111, v1")
e("v_bfe_u32 v106, v110, 1, 1")
e("v_xor_b32 v1, v1, v106")
e("v_lshl_add_u32 v105, v1, 4, v105")
e(f"v_add_u32 v{V_B}, {B_BASE}, v105")
e(f"v_xor_b32 v1, 16, v{V_B}")
e(f"v_add_u32 v{V_B+1}, 512, v1")
e(f"v_xor_b32 v{V_B+2}, 64, v{V_B}")
e(f"v_xor_b32 v{V_B+3}, 64, v{V_B+1}")
e(f"s_lshl_b32 s{S_TMP}, s{S_WAVE}, 14")
e(f"v_mul_u32_u24 v1, {ERS}, v110")
e(f"v_add_u32 v1, s{S_TMP}, v1")
e(f"v_lshl_add_u32 v{V_EW}, v111, 4, v1")
e(f"v_lshl_add_u32 v{V_EW6}, v111, 3, v1")
e("v_mul_u32_u24 v1, 4682, v0")
e("v_lshrrev_b32 v1, 16, v1")
e("v_mul_u32_u24 v105, 14, v1")
e("v_sub_u32 v105, v0, v105")
e(f"v_mul_u32_u24 v106, {ERS}, v1")
e("v_lshl_add_u32 v106, v105, 4, v106")
e(f"v_add_u32 v{V_ER}, s{S_TMP}, v106")
e(f"s_lshl_b32 s{S_TMP}, s{S_WAVE}, 6")
e(f"s_add_u32 s{S_TMP}, s{S_TMP}, s{S_M0}")
e(f"v_add_u32 v1, s{S_TMP}, v1")
e("v_mul_u32_u24 v1, 7168, v1")
e(f"s_lshl_b32 s{S_TMP2}, s{S_N0}, 1")
e(f"v_add_u32 v1, s{S_TMP2}, v1")
e(f"v_lshl_add_u32 v{V_OUT}, v105, 4, v1")
for r in range(112):
    e(f"v_mov_b32 v{ACC+r}, 0")
e("s_waitcnt lgkmcnt(0)")
srd(S_O, 10, 2048 * 3584 * 2)
if opts["diag"]:
    e(f"v_mov_b32 v{V_STAMP[0]}, s{S_ST}")
S_T = 16
S_TOFF, S_TINC, S_TLIM = 45, 46, 47
V_TOFF, V_TD = 240, 241
def touch():
    if not opts["touch"]: return
    global tcount
    tcount += 1
    e(f"s_cmp_lt_u32 s{S_TOFF}, s{S_TLIM}")
    e(f"s_cbranch_scc0 L_tskip{tcount}")
    e(f"buffer_load_dword v{V_TD}, v{V_TOFF}, s[{S_T}:{S_T+3}], s{S_TOFF} offen")
    lab(f"L_tskip{tcount}")
    e(f"s_add_u32 s{S_TOFF}, s{S_TOFF}, s{S_TINC}")
tcount = 0
if opts["touch"]:
    two = opts["touch"] == 2
    qwave = 2 if two else 1
    e(f"s_lshr_b32 s{S_TMP}, s2, 3")
    e(f"s_and_b32 s{S_TMP2}, s2, 7")
    e(f"s_lshl_b32 s55, s{S_TMP}, 6")
    e(f"v_add_u32 v1, s55, v0")
    e("v_lshlrev_b32 v1, 11, v1")
    e(f"s_lshl_b32 s55, s{S_WAVE}, 6")
    e(f"v_add_u32 v242, s55, v1")
    if two:
        e("v_cmp_le_u32 vcc, 28, v0")
        e("v_subrev_u32 v1, 28, v0")
        e("s_nop 0")
        e("v_cndmask_b32 v243, v0, v1, vcc")
        e("v_cndmask_b32 v244, 0, 1, vcc")
        e("v_lshlrev_b32 v243, 6, v243")
        nl = 56
    else:
        e("v_cmp_le_u32 vcc, 14, v0")
        e("v_subrev_u32 v1, 14, v0")
        e("s_nop 0")
        e("v_cndmask_b32 v243, v0, v1, vcc")
        e("v_cndmask_b32 v244, 0, 1, vcc")
        e("v_lshlrev_b32 v243, 7, v243")
        nl = 28
    e(f"s_lshl_b32 s55, s{S_TMP}, 1")
    e(f"v_add_u32 v244, s55, v244")
    e("v_mul_u32_u24 v244, 14336, v244")
    e("v_add_u32 v243, v243, v244")
    e(f"s_mul_i32 s55, s{S_TMP2}, 1792")
    e("v_add_u32 v243, s55, v243")
    e("v_bfrev_b32 v245, 1")
    e(f"v_cmp_gt_u32 vcc, {nl}, v0")
    e("s_nop 1")
    e("v_cndmask_b32 v243, v245, v243, vcc")
    e(f"s_cmp_lt_u32 s{S_WAVE}, {qwave}")
    e("s_cselect_b64 vcc, -1, 0")
    e(f"s_cselect_b32 s{S_T}, s4, s6")
    e(f"s_cselect_b32 s{S_T+1}, s5, s7")
    e(f"s_mov_b32 s{S_T+2}, {1024*3584*4}")
    e(f"s_cselect_b32 s{S_T+2}, {2048*1024*2}, s{S_T+2}")
    e(f"s_mov_b32 s{S_TINC}, {64*14336}")
    e(f"s_cselect_b32 s{S_TINC}, 128, s{S_TINC}")
    e(f"s_mov_b32 s{S_TLIM}, {16*64*14336}")
    e(f"s_cselect_b32 s{S_TLIM}, {16*128}, s{S_TLIM}")
    e(f"s_mov_b32 s{S_TOFF}, {opts['t0']*64*14336}")
    e(f"s_cselect_b32 s{S_TOFF}, {opts['t0']*128}, s{S_TOFF}")
    e(f"s_and_b32 s{S_T+1}, s{S_T+1}, 0xffff")
    e(f"s_mov_b32 s{S_T+3}, 0x00020000")
    e(f"v_cndmask_b32 v{V_TOFF}, v243, v242, vcc")
    e(f"s_cmp_gt_u32 s{S_WAVE}, {qwave}")
    e(f"s_cselect_b32 s{S_TLIM}, 0, s{S_TLIM}")
    nmin = min(opts["tdx"], opts["tdq"]); nmax = max(opts["tdx"], opts["tdq"])
    for k in range(opts["t0"], nmin):
        touch()
    assert opts["tdq"] >= opts["tdx"]
    e(f"s_cmp_lg_u32 s{S_WAVE}, {qwave}")
    e("s_cbranch_scc1 L_tq_done")
    for k in range(nmin, nmax):
        touch()
    lab("L_tq_done")

S_PX, S_PQ = 16, 20
S_PQOFF, S_PXOFF, S_PST = 45, 46, 47
V_PQO, V_PXO, V_PD = 240, 241, 244
pcount = 0
def pf_stage(dyn):
    global pcount
    pcount += 1
    if dyn:
        e(f"s_cmp_lt_u32 s{S_PST}, 16")
        e(f"s_cbranch_scc0 L_pskip{pcount}")
    e(f"buffer_load_dwordx4 v[{V_PD}:{V_PD+3}], v{V_PQO}, s[{S_PQ}:{S_PQ+3}], s{S_PQOFF} offen")
    e(f"s_and_b32 s{S_TMP}, s{S_PST}, 3")
    e(f"s_cmp_lg_u32 s{S_TMP}, s{S_WAVE}")
    e(f"s_cbranch_scc1 L_pskip{pcount}")
    e(f"s_lshl_b32 s{S_PXOFF}, s{S_PST}, 7")
    e(f"buffer_load_dwordx4 v[{V_PD}:{V_PD+3}], v{V_PXO}, s[{S_PX}:{S_PX+3}], s{S_PXOFF} offen")
    lab(f"L_pskip{pcount}")
    e(f"s_add_u32 s{S_PQOFF}, s{S_PQOFF}, {64*14336}")
    e(f"s_add_u32 s{S_PST}, s{S_PST}, 1")
if opts["pf"]:
    srd(S_PX, 4, 2048 * 1024 * 2)
    srd(S_PQ, 6, 1024 * 3584 * 4)
    e(f"s_lshr_b32 s{S_TMP}, s2, 3")
    e(f"s_lshl_b32 s{S_TMP}, s{S_TMP}, 1")
    e(f"s_lshr_b32 s{S_TMP2}, s{S_WAVE}, 1")
    e(f"s_add_u32 s{S_TMP}, s{S_TMP}, s{S_TMP2}")
    e(f"s_mul_i32 s{S_TMP}, s{S_TMP}, 14336")
    e(f"s_and_b32 s{S_TMP2}, s2, 7")
    e(f"s_mul_i32 s{S_TMP2}, s{S_TMP2}, 1792")
    e(f"s_add_u32 s{S_TMP}, s{S_TMP}, s{S_TMP2}")
    e(f"s_and_b32 s{S_TMP2}, s{S_WAVE}, 1")
    e(f"s_mul_i32 s{S_TMP2}, s{S_TMP2}, 896")
    e(f"s_add_u32 s{S_TMP}, s{S_TMP}, s{S_TMP2}")
    e("v_lshlrev_b32 v1, 4, v0")
    e(f"v_add_u32 v1, s{S_TMP}, v1")
    e("v_bfrev_b32 v245, 1")
    e("v_cmp_gt_u32 vcc, 56, v0")
    e("s_nop 1")
    e(f"v_cndmask_b32 v{V_PQO}, v245, v1, vcc")
    e("v_lshrrev_b32 v1, 3, v0")
    e(f"s_lshl_b32 s{S_TMP}, s2, 3")
    e(f"v_add_u32 v1, s{S_TMP}, v1")
    e("v_lshlrev_b32 v1, 11, v1")
    e("v_and_b32 v245, 7, v0")
    e(f"v_lshl_add_u32 v{V_PXO}, v245, 4, v1")
    e(f"s_mov_b32 s{S_PST}, {opts['p0']}")
    e(f"s_mov_b32 s{S_PQOFF}, {opts['p0']*64*14336}")
    for k in range(opts["p0"], opts["p1"]):
        pf_stage(False)

S_BSTEP, S_BCNT, S_BQ, S_BX = 45, 46, 47, 55
bcount = 0
def burst_code():
    for r in range(8):
        for hf in range(2):
            e(f"buffer_load_dwordx4 v[{V_PD}:{V_PD+3}], v{V_PQO}, s[{S_PQ}:{S_PQ+3}], s{S_BQ} offen offset:{hf*896}")
        e(f"s_add_u32 s{S_BQ}, s{S_BQ}, 14336")
        if opts["bx"] == 1 and r % 2 == 1:
            e(f"buffer_load_dwordx4 v[{V_PD}:{V_PD+3}], v{V_PXO}, s[{S_PX}:{S_PX+3}], s{S_BX} offen")
            e(f"s_add_u32 s{S_BX}, s{S_BX}, 16384")
        if opts["bx"] == 2:
            for k in range(4):
                e(f"buffer_load_dwordx4 v[{V_PD}:{V_PD+3}], v{V_PXO}, s[{S_PX}:{S_PX+3}], s{S_BX} offen")
                e(f"s_add_u32 s{S_BX}, s{S_BX}, 16384")
def burst_check():
    global bcount
    if not opts["burst"]: return
    bcount += 1
    e(f"s_cmp_lg_u32 s{S_BCNT}, s{S_BSTEP}")
    e(f"s_cbranch_scc1 L_bskip{bcount}")
    e("s_getpc_b64 s[50:51]")
    e(f"s_add_u32 s50, s50, 12")
    e(f"s_addc_u32 s51, s51, 0")
    e("s_branch L_burst")
    lab(f"L_bskip{bcount}")
    e(f"s_add_u32 s{S_BCNT}, s{S_BCNT}, 1")
if opts["burst"]:
    srd(S_PX, 4, 2048 * 1024 * 2)
    srd(S_PQ, 6, 1024 * 3584 * 4)
    e(f"s_lshr_b32 s{S_TMP}, s2, 3")
    e(f"s_lshr_b32 s{S_BSTEP}, s{S_TMP}, 1")
    e(f"s_and_b32 s{S_TMP}, s{S_TMP}, 1")
    e(f"s_lshl_b32 s{S_BQ}, s{S_BSTEP}, 6")
    e(f"s_lshl_b32 s{S_TMP2}, s{S_TMP}, 5")
    e(f"s_add_u32 s{S_BQ}, s{S_BQ}, s{S_TMP2}")
    e(f"s_lshl_b32 s{S_TMP2}, s{S_WAVE}, 3")
    e(f"s_add_u32 s{S_BQ}, s{S_BQ}, s{S_TMP2}")
    e(f"s_mul_i32 s{S_BQ}, s{S_BQ}, 14336")
    e(f"s_and_b32 s{S_TMP2}, s2, 7")
    e(f"s_mul_i32 s{S_BX}, s{S_TMP2}, 1792")
    e(f"s_add_u32 s{S_BQ}, s{S_BQ}, s{S_BX}")
    if opts["bx"] == 2:
        e(f"s_lshl_b32 s{S_BX}, s{S_TMP}, 2")
        e(f"s_add_u32 s{S_BX}, s{S_BX}, s{S_WAVE}")
        e(f"s_lshl_b32 s{S_BX}, s{S_BX}, 19")
    else:
        e(f"s_lshl_b32 s{S_BX}, s{S_TMP2}, 1")
        e(f"s_add_u32 s{S_BX}, s{S_BX}, s{S_TMP}")
        e(f"s_lshl_b32 s{S_BX}, s{S_BX}, 2")
        e(f"s_add_u32 s{S_BX}, s{S_BX}, s{S_WAVE}")
        e(f"s_lshl_b32 s{S_BX}, s{S_BX}, 16")
    e(f"s_lshl_b32 s{S_TMP2}, s{S_BSTEP}, 7")
    e(f"s_add_u32 s{S_BX}, s{S_BX}, s{S_TMP2}")
    e("v_lshlrev_b32 v1, 4, v0")
    e("v_bfrev_b32 v245, 1")
    e("v_cmp_gt_u32 vcc, 56, v0")
    e("s_nop 1")
    e(f"v_cndmask_b32 v{V_PQO}, v245, v1, vcc")
    e("v_lshrrev_b32 v1, 3, v0")
    e("v_lshlrev_b32 v1, 11, v1")
    e("v_and_b32 v245, 7, v0")
    e(f"v_lshl_add_u32 v{V_PXO}, v245, 4, v1")
    e(f"s_cmp_lt_u32 s{S_BSTEP}, 2")
    e(f"s_cselect_b32 s{S_TMP}, 99, 0")
    e(f"s_sub_i32 s{S_BSTEP}, s{S_BSTEP}, {opts['bd']}")
    e(f"s_max_i32 s{S_BSTEP}, s{S_BSTEP}, 0")
    e(f"s_add_u32 s{S_BSTEP}, s{S_BSTEP}, s{S_TMP}")
    e(f"s_mov_b32 s{S_BCNT}, 0")
    if opts["burst"] >= 2:
        e(f"s_sleep {opts['burst']}")
    burst_check()

def c_reads(slotA, slotB, kh, st):
    r = []
    va = V_A + kh * 2 + (slotA >> 1)
    ao = (slotA & 1) * 32768
    bo = slotB * B_SLOT
    def xr(mt):
        return f"ds_read_b128 v[{X[st]+mt*4}:{X[st]+mt*4+3}], v{va} offset:{ao + mt*2048}"
    def wr(t):
        if t < 6:
            return f"ds_read_b128 v[{W[st]+t*4}:{W[st]+t*4+3}], v{V_B + kh*2 + (t&1)} offset:{bo + (t>>1)*4096}"
        return f"ds_read_b128 v[{W[st]+t*4}:{W[st]+t*4+3}], v{V_B6 + kh} offset:{bo}"
    r.append(wr(0))
    for mt in range(4):
        r.append(xr(mt))
    for t in range(1, 7):
        r.append(wr(t))
    return r

def c_phase(st, reads, commit=False):
    idx = 0
    for t in range(7):
        for mt in range(4):
            a = acc(t, mt)
            e(f"v_mfma_f32_16x16x32_bf16 v[{a}:{a+3}], v[{W[st]+t*4}:{W[st]+t*4+3}], v[{X[st]+mt*4}:{X[st]+mt*4+3}], v[{a}:{a+3}]")
            if idx < len(reads):
                e(reads[idx])
            idx += 1
    e("s_waitcnt lgkmcnt(0)")
    if commit:
        stamp_commit()

e("s_barrier")
stamp()
for r in c_reads(0, 0, 0, 0):
    e(r)
e(f"s_mov_b32 s{S_LOOP}, 0")
e("s_waitcnt lgkmcnt(0)")
stamp_commit()
lab("L_cloop")
for u in range(4):
    c_phase(0, c_reads(u % NA, u % NB, 1, 1))
    e("s_barrier")
    stamp()
    touch()
    burst_check()
    if opts["pf"] and opts["p1"] < 16:
        pf_stage(True)
    c_phase(1, c_reads((u + 1) % NA, (u + 1) % NB, 0, 0), True)
e(f"s_add_u32 s{S_LOOP}, s{S_LOOP}, 1")
e(f"s_cmp_lt_u32 s{S_LOOP}, 4")
e("s_cbranch_scc1 L_cloop")
e("s_nop 7")
e("s_nop 3")
ci = 0
for mt in range(4):
    for T in range(3):
        c = CVT + (ci % 6) * 4
        ci += 1
        a, b = acc(2 * T, mt), acc(2 * T + 1, mt)
        e(f"v_cvt_pk_bf16_f32 v{c}, v{a}, v{a+1}")
        e(f"v_cvt_pk_bf16_f32 v{c+1}, v{a+2}, v{a+3}")
        e(f"v_cvt_pk_bf16_f32 v{c+2}, v{b}, v{b+1}")
        e(f"v_cvt_pk_bf16_f32 v{c+3}, v{b+2}, v{b+3}")
        e(f"ds_write_b128 v{V_EW}, v[{c}:{c+3}] offset:{mt*16*ERS + T*64}")
    c = CVT + (ci % 6) * 4
    ci += 1
    a = acc(6, mt)
    e(f"v_cvt_pk_bf16_f32 v{c}, v{a}, v{a+1}")
    e(f"v_cvt_pk_bf16_f32 v{c+1}, v{a+2}, v{a+3}")
    e(f"ds_write_b64 v{V_EW6}, v[{c}:{c+1}] offset:{mt*16*ERS + 192}")
e("s_mov_b32 s38, -1")
e("s_mov_b32 s39, 0x00ffffff")
e("s_waitcnt lgkmcnt(0)")
stamp_now()
e("s_mov_b64 exec, s[38:39]")
for it in range(16):
    e(f"ds_read_b128 v[{16+it*4}:{16+it*4+3}], v{V_ER} offset:{it*4*ERS}")
e(f"s_mov_b32 s{S_OOFF}, 0")
stf = ["", " nt", " sc1", " sc0 sc1", " sc0 sc1 nt"][opts["stflag"]]
for it in range(16):
    e(f"s_waitcnt lgkmcnt({15-it})")
    e(f"buffer_store_dwordx4 v[{16+it*4}:{16+it*4+3}], v{V_OUT}, s[{S_O}:{S_O+3}], s{S_OOFF} offen{stf}")
    if it < 15:
        e(f"s_add_u32 s{S_OOFF}, s{S_OOFF}, {4*7168}")
stamp_flush()
if opts["dbg"]:
    e("s_mov_b64 exec, -1")
    e("s_load_dwordx2 s[56:57], s[0:1], 32")
    e("s_waitcnt vmcnt(0) lgkmcnt(0)")
    e("s_memtime s[68:69]")
    e("s_memrealtime s[70:71]")
    e("s_waitcnt lgkmcnt(0)")
    e("s_sub_u32 s68, s68, s64")
    e("s_sub_u32 s70, s70, s66")
    e("s_mov_b32 s60, s56")
    e("s_and_b32 s61, s57, 0xffff")
    e("s_mov_b32 s62, 256")
    e("s_mov_b32 s63, 0x00020000")
    e(f"s_cmp_lg_u32 s{S_WAVE}, 0")
    e("s_cbranch_scc1 L_dbgdone")
    e("s_and_b32 s58, s2, 31")
    e("s_cmp_lg_u32 s58, 0")
    e("s_cbranch_scc1 L_dbgdone")
    e("s_lshr_b32 s58, s2, 5")
    e("s_lshl_b32 s58, s58, 3")
    e("v_mov_b32 v2, s68")
    e("v_mov_b32 v3, s70")
    e("v_mov_b32 v1, 0")
    e("s_mov_b64 exec, 1")
    e("buffer_store_dwordx2 v[2:3], v1, s[60:63], s58 offen")
    lab("L_dbgdone")
e("s_endpgm")
if opts["burst"]:
    lab("L_burst")
    burst_code()
    e("s_setpc_b64 s[50:51]")

lab("L_producer")
V_STAMP[0] = 124
V_QOFF = 16
V_XOFF = 24
V_W = 32
V_LOFF = 34
V_LO0, V_LO1, V_HI0, V_HI1 = 36, 40, 44, 48
V_SEL = 52
V_PT = 60
V_OUTB = 76
V_T = 92
V_LH = 108
V_Q = 128

if opts["prio_p"]:
    e(f"s_setprio {opts['prio_p']}")
e(f"s_and_b32 s{S_PW}, s{S_WAVE}, 3")
e("v_lshrrev_b32 v1, 5, v0")
e("v_and_b32 v2, 31, v0")
e("v_cmp_gt_u32 vcc, 28, v2")
e("v_bfrev_b32 v6, 1")
e(f"s_mul_i32 s{S_TMP}, s{S_PW}, 229376")
e(f"s_lshl_b32 s{S_TMP2}, s{S_N0}, 2")
e(f"s_add_u32 s{S_TMP}, s{S_TMP}, s{S_TMP2}")
e("v_mul_u32_u24 v3, 114688, v1")
e("v_lshl_add_u32 v3, v2, 4, v3")
e(f"v_add_u32 v3, s{S_TMP}, v3")
e(f"v_cndmask_b32 v{V_QOFF}, v6, v3, vcc")
for kk in range(1, 8):
    e(f"v_add_u32 v{V_QOFF+kk}, {kk*14336}, v{V_QOFF}")
e(f"s_lshl_b32 s{S_TMP2}, s{S_N0}, 1")
e("v_lshlrev_b32 v3, 3, v2")
e(f"v_add_u32 v3, s{S_TMP2}, v3")
e(f"v_cndmask_b32 v{V_LOFF}, v6, v3, vcc")
e("v_lshrrev_b32 v3, 3, v0")
e("v_and_b32 v4, 7, v0")
e("v_lshrrev_b32 v5, 4, v0")
e("v_xor_b32 v4, v4, v5")
e("v_lshlrev_b32 v4, 4, v4")
e("v_lshl_add_u32 v3, v3, 11, v4")
e(f"s_lshl_b32 s{S_TMP}, s{S_PW}, 6")
e(f"s_add_u32 s{S_TMP}, s{S_TMP}, s{S_M0}")
e(f"s_lshl_b32 s{S_TMP}, s{S_TMP}, 11")
e(f"v_add_u32 v3, s{S_TMP}, v3")
e("v_xor_b32 v4, 64, v3")
for i in range(8):
    src = 4 if (i & 1) else 3
    e(f"v_add_u32 v{V_XOFF+i}, {i*16384 - (i&3)*1024}, v{src}")
e(f"s_lshl_b32 s{S_M0B}, s{S_PW}, 13")
S_QST = 50
if opts["ra"] or opts["rb"] or opts["rc"]:
    e(f"s_mul_i32 s{S_QST}, s{S_MT}, {opts['ra']}")
    e(f"s_lshr_b32 s{S_TMP}, s2, 3")
    e(f"s_and_b32 s{S_TMP}, s{S_TMP}, 3")
    e(f"s_mul_i32 s{S_TMP}, s{S_TMP}, {opts['rb']}")
    e(f"s_add_u32 s{S_QST}, s{S_QST}, s{S_TMP}")
    e(f"s_and_b32 s{S_TMP}, s2, 7")
    e(f"s_mul_i32 s{S_TMP}, s{S_TMP}, {opts['rc']}")
    e(f"s_add_u32 s{S_QST}, s{S_QST}, s{S_TMP}")
    e(f"s_and_b32 s{S_QST}, s{S_QST}, 15")
else:
    e(f"s_mov_b32 s{S_QST}, 0")
e(f"s_lshl_b32 s{S_XOFF}, s{S_QST}, 7")
e(f"s_mul_i32 s{S_QOFF}, s{S_QST}, {64*14336}")
e(f"s_lshl_b32 s{S_TMP}, s{S_PW}, 1")
e(f"v_add_u32 v3, s{S_TMP}, v1")
e("v_and_b32 v4, 7, v2")
e("v_lshlrev_b32 v5, 1, v2")
e("v_and_b32 v5, 7, v5")
e("v_cmp_gt_u32 s[38:39], 24, v2")
e("v_mov_b32 v7, 0x40000")
e("s_nop 0")
e("v_cndmask_b32 v4, v5, v4, s[38:39]")
e("v_xor_b32 v4, v3, v4")
e("v_lshlrev_b32 v4, 4, v4")
e("v_lshl_add_u32 v4, v2, 9, v4")
e(f"v_add_u32 v4, {B_BASE}, v4")
e(f"v_cndmask_b32 v{V_W}, v7, v4, vcc")
e(f"v_xor_b32 v4, 16, v{V_W}")
e(f"v_add_u32 v{V_W+1}, 256, v4")
e("s_waitcnt lgkmcnt(0)")
srd(S_L, 8, 8 * 3584 * 2)
srd(S_Q, 6, 1024 * 3584 * 4)
srd(S_X, 4, 2048 * 1024 * 2)
if opts["diag"]:
    e(f"v_mov_b32 v{V_STAMP[0]}, s{S_ST}")

vm = []
if opts["cold1"] in (1, 2):
    e("s_load_dwordx2 s[72:73], s[0:1], 40")
    e("s_waitcnt lgkmcnt(0)")
    e("s_mov_b32 s76, s72")
    e("s_and_b32 s77, s73, 0xffff")
    e("s_mov_b32 s78, 0x10000000")
    e("s_mov_b32 s79, 0x00020000")
    e("s_lshl_b32 s74, s2, 18")
    e("s_add_u32 s74, s74, 0x1000000")
    e(f"s_lshl_b32 s75, s{S_PW}, 12")
    e("s_add_u32 s74, s74, s75")
    e("v_lshlrev_b32 v127, 4, v0")

if opts["split8"]:
    e(f"s_cmp_ge_u32 s{S_WAVE}, 4")
    e("s_cselect_b64 vcc, -1, 0")
    for k in range(4):
        e(f"v_cndmask_b32 v{V_QOFF+k}, v{V_QOFF+k}, v{V_QOFF+4+k}, vcc")
        e(f"v_cndmask_b32 v{V_XOFF+k}, v{V_XOFF+k}, v{V_XOFF+4+k}, vcc")
if opts["utouch"]:
    e("v_lshlrev_b32 v127, 11, v0")


def q_items(stage):
    base = V_Q + (stage % PQ) * 32
    it = []
    NI = 4 if opts["split8"] else 8
    for kk in range(NI):
        ins = [f"buffer_load_dwordx4 v[{base+kk*4}:{base+kk*4+3}], v{V_QOFF+kk}, s[{S_Q}:{S_Q+3}], s{S_QOFF} offen"]
        if opts["noq"]:
            ins = [f"buffer_load_dword v{base+kk*4}, v{V_LOFF}, s[{S_L}:{S_L+3}], 0 offen"]
        if kk == NI - 1:
            ins.append(f"s_add_u32 s{S_QST}, s{S_QST}, 1")
            ins.append(f"s_and_b32 s{S_QST}, s{S_QST}, 15")
            ins.append(f"s_mul_i32 s{S_QOFF}, s{S_QST}, {64*14336}")
        it.append((("q", stage), ins, None))
    return it

def a_items(stage):
    slot = stage % NA
    it = []
    NI = 4 if opts["split8"] else 8
    for i in range(NI):
        pre = None
        if i % 4 == 0:
            pre = f"s_add_u32 m0, s{S_M0B}, {slot*A_SLOT + (i//4)*4096}"
        ins = [f"buffer_load_dwordx4 v{V_XOFF+i}, s[{S_X}:{S_X+3}], s{S_XOFF} offen offset:{(i&3)*1024} lds"]
        if opts["noa"]:
            ins = [f"buffer_load_dword v126, v{V_LOFF}, s[{S_L}:{S_L+3}], 0 offen"]
            if opts["utouch"] and i == 0:
                ins = [f"buffer_load_dword v126, v127, s[{S_X}:{S_X+3}], 0 offen"]
        if i == NI - 1:
            ins.append(f"s_add_u32 s{S_XOFF}, s{S_XOFF}, 128")
            ins.append(f"s_and_b32 s{S_XOFF}, s{S_XOFF}, 2047")
        it.append((("a", stage), ins, pre))
    return it

def emit_item(item, padded=False):
    tag, ins, pre = item
    if pre is not None and not padded:
        e(pre)
        e("s_nop 0")
    for s in ins:
        e(s)
    vm.append(tag)

def younger(tag):
    last = max(i for i, t in enumerate(vm) if t == tag)
    return len(vm) - 1 - last

for l in range(8):
    e(f"s_mov_b32 s{S_TMP}, {l*7168}")
    e(f"buffer_load_dwordx2 v[{V_T+2*l}:{V_T+2*l+1}], v{V_LOFF}, s[{S_L}:{S_L+3}], s{S_TMP} offen")
    vm.append("L")
for it in q_items(0): emit_item(it)
for it in a_items(0): emit_item(it)
if opts["st"] >= 1:
    for it in q_items(1): emit_item(it)
    for it in a_items(1): emit_item(it)

e(f"s_waitcnt vmcnt({younger('L')})")
stamp_now()
for d in range(2):
    for hb in range(2):
        t0, t1, t2, t3 = [V_T + 2 * (4 * hb + k) + d for k in range(4)]
        lo = (V_LO0, V_LO1)[hb]
        hi = (V_HI0, V_HI1)[hb]
        for cc in range(2):
            sc = (S_C0, S_C1)[cc]
            col = 2 * d + cc
            e(f"v_perm_b32 v{V_PT}, v{t1}, v{t0}, s{sc}")
            e(f"v_perm_b32 v{V_PT+1}, v{t3}, v{t2}, s{sc}")
            e(f"v_perm_b32 v{lo+col}, v{V_PT+1}, v{V_PT}, s{S_C2}")
            e(f"v_perm_b32 v{hi+col}, v{V_PT+1}, v{V_PT}, s{S_C3}")

sched = {-1: [("q", 1), ("a", 1), ("q", 2)], 0: [("a", 2), ("q", 3), ("a", 3)]}
if opts["st"] == 1:
    sched = {-1: [], 0: [("q", 2), ("a", 2), ("q", 3), ("a", 3)]}

for s in range(1, 15):
    g = []
    if s + 3 < NSTEP:
        g.append(("a", s + 3))
        g.append(("q", s + 3))
    sched[s] = g

def p_body(s):
    st = s + 1
    base = V_Q + (st % PQ) * 32
    Q = lambda kk, i: base + kk * 4 + i
    bo = (st % NB) * B_SLOT
    valu = []
    for hb in range(2):
        for i in range(4):
            valu.append(f"v_lshl_or_b32 v{V_PT+hb*8+i*2}, v{Q(4*hb+1,i)}, 8, v{Q(4*hb,i)}")
            valu.append(f"v_lshl_or_b32 v{V_PT+hb*8+i*2+1}, v{Q(4*hb+3,i)}, 8, v{Q(4*hb+2,i)}")
    NP1 = len(valu)
    for hb in range(2):
        for i in range(4):
            valu.append(f"v_lshl_or_b32 v{V_SEL+hb*4+i}, v{V_PT+hb*8+i*2+1}, 16, v{V_PT+hb*8+i*2}")
    for i in range(4):
        for hb in range(2):
            valu.append(f"v_perm_b32 v{V_LH+i*4+hb*2}, v{V_LO1+i}, v{V_LO0+i}, v{V_SEL+hb*4+i}")
            valu.append(f"v_perm_b32 v{V_LH+i*4+hb*2+1}, v{V_HI1+i}, v{V_HI0+i}, v{V_SEL+hb*4+i}")
    for i in range(4):
        for hb in range(2):
            valu.append(f"v_perm_b32 v{V_OUTB+i*4+hb*2}, v{V_LH+i*4+hb*2+1}, v{V_LH+i*4+hb*2}, s{S_C0}")
            valu.append(f"v_perm_b32 v{V_OUTB+i*4+hb*2+1}, v{V_LH+i*4+hb*2+1}, v{V_LH+i*4+hb*2}, s{S_C1}")
        valu.append(f"ds_write_b128 v{V_W+(i>>1)}, v[{V_OUTB+i*4}:{V_OUTB+i*4+3}] offset:{bo + (i&1)*128}")
    if opts["pure"]:
        valu = ["s_nop 0"] * 17
    items = []
    for kind, stage in sched[s]:
        its = q_items(stage) if kind == "q" else a_items(stage)
        late = (kind == "q" and stage % PQ == st % PQ)
        for it in its:
            items.append((it, late))
    e(f"s_waitcnt vmcnt({younger(('q', st))})")
    if opts["cold1"] in (1, 2):
        if opts["cold1"] == 1:
            e(f"s_cmp_lg_u32 s{S_PW}, 0")
            e(f"s_cselect_b32 s75, 0x20000000, s74")
        else:
            e("s_mov_b32 s75, s74")
        e("buffer_load_dwordx4 v[120:123], v127, s[76:79], s75 offen")
        e("s_add_u32 s74, s74, 16384")
        vm.append("cold")
    n = len(items)
    nv = len(valu)
    pos = []
    if opts["ord"] == 1:
        ni = max(n - 8, 0)
        for k in range(n):
            p = (k * nv) // ni if k < ni else nv
            if items[k][1]:
                p = max(p, NP1)
            pos.append(p)
    elif opts["ord"] == 2:
        ni = (2 * n) // 3
        for k in range(n):
            p = (k * nv) // ni if k < ni else nv
            if items[k][1]:
                p = max(p, NP1)
            pos.append(p)
    else:
      for k in range(n):
        p = (k * nv) // n if n else 0
        if items[k][1]:
            p = max(p, NP1)
        pos.append(p)
    for k in range(1, n):
        pos[k] = max(pos[k], pos[k - 1])
    k = 0
    for vi in range(nv + 1):
        while k < n and pos[k] == vi:
            emit_item(items[k][0])
            k += 1
        if vi < nv:
            e(valu[vi])
    e(f"s_waitcnt vmcnt({younger(('a', st))}) lgkmcnt(0)")
    stamp_commit()
    if not opts["pure"]:
        e("s_barrier")
    stamp()

bodies = {}
for s in range(-1, 15):
    start = len(out)
    p_body(s)
    bodies[s] = out[start:]
    del out[start:]
import re
for s in range(1, 5):
  for rep in (4, 8):
    a, b = bodies[s], bodies[s + rep]
    assert len(a) == len(b)
    for i in range(len(a)):
        if a[i] != b[i]:
            ma = re.match(r"(\s*s_waitcnt vmcnt\()(\d+)(\).*)", a[i])
            mb = re.match(r"(\s*s_waitcnt vmcnt\()(\d+)(\).*)", b[i])
            assert ma and mb and ma.group(3) == mb.group(3), (a[i], b[i])
            a[i] = ma.group(1) + str(min(int(ma.group(2)), int(mb.group(2)))) + ma.group(3)
stamp()
for s in range(-1, 1):
    out.extend(bodies[s])
e(f"s_mov_b32 s{S_LOOP}, 0")
lab("L_ploop")
for s in range(1, 5):
    out.extend(bodies[s])
e(f"s_add_u32 s{S_LOOP}, s{S_LOOP}, 1")
e(f"s_cmp_lt_u32 s{S_LOOP}, 3")
e("s_cbranch_scc1 L_ploop")
for s in range(13, 15):
    out.extend(bodies[s])
if opts["diag"]:
    e("s_waitcnt lgkmcnt(0)")
    stamp_commit()
    stamp_flush()
lab("L_end")
e("s_endpgm")
lab("L_codeend")

out.append(f""".section .rodata,"a"
.p2align 6
.amdhsa_kernel {NAME}_kernel
  .amdhsa_next_free_vgpr 256
  .amdhsa_next_free_sgpr 80
  .amdhsa_accum_offset 256
  .amdhsa_group_segment_fixed_size 0
  .amdhsa_kernarg_size 48
  .amdhsa_user_sgpr_count 2
  .amdhsa_user_sgpr_kernarg_segment_ptr 1
  .amdhsa_system_sgpr_workgroup_id_x 1
.end_amdhsa_kernel""")

open(sys.argv[1], "w").write("\n".join(out) + "\n")
```

```python
import sys, re

NAME = "standalone__weight_only_int_squeezellm__prompt"
NA = 4
NB = 2
PQ = 4
NSTEP = 16
A_SLOT = 32768
B_BASE = NA * A_SLOT
B_SLOT = 14336
LDS = B_BASE + NB * B_SLOT

opts = dict(prio_c=0, prio_p=0, diag=0, dbg=0, stflag=1, bd=5, cpf=4, alead=2, lswap=1, ord=0, bmin=3, ps=2, dpos=12, dgap=4, fe=1, coop=6)
for a in sys.argv[2:]:
    k, v = a.split("=")
    opts[k] = int(v)

out = []
def e(s):
    out.append("    " + s)
def lab(s):
    out.append(s + ":")

S_X, S_Q, S_L, S_O = 12, 16, 20, 24
S_MT, S_NT, S_M0, S_N0 = 28, 29, 30, 31
S_C0, S_C1, S_C2, S_C3 = 32, 33, 34, 35
S_WAVE = 36
S_PW = 37
S_MASK = 38
S_QOFF = 40
S_XOFF = 41
S_TMP = 42
S_TMP2 = 43
S_OOFF = 44
S_BSTEP, S_BCNT, S_BQ = 45, 46, 47
S_LOOP = 48
S_M0B = 49
S_RET = 50
S_ST = 52
S_SI = 54
S_BX = 55
S_PC = 64
V_STAMP = [250]
def stamp():
    if not opts["diag"]: return
    e(f"s_memtime s[{S_ST}:{S_ST+1}]")
def stamp_commit():
    if not opts["diag"]: return
    e(f"v_cmp_eq_u32 vcc, s{S_SI}, v0")
    e(f"v_mov_b32 v{V_STAMP[0]+1}, s{S_ST}")
    e("s_nop 0")
    e(f"v_cndmask_b32 v{V_STAMP[0]}, v{V_STAMP[0]}, v{V_STAMP[0]+1}, vcc")
    e(f"s_add_u32 s{S_SI}, s{S_SI}, 1")
def stamp_now():
    if not opts["diag"]: return
    stamp()
    e("s_waitcnt lgkmcnt(0)")
    stamp_commit()
def stamp_flush():
    if not opts["diag"]: return
    e("s_mov_b64 exec, -1")
    e("s_load_dwordx2 s[56:57], s[0:1], 40")
    e("s_waitcnt vmcnt(0) lgkmcnt(0)")
    stamp_now()
    e("s_mov_b32 s60, s56")
    e("s_and_b32 s61, s57, 0xffff")
    e("s_mov_b32 s62, 0x100000")
    e("s_mov_b32 s63, 0x00020000")
    e(f"s_lshl_b32 s58, s2, 3")
    e(f"s_add_u32 s58, s58, s{S_WAVE}")
    e("s_lshl_b32 s58, s58, 8")
    e("v_lshlrev_b32 v1, 2, v0")
    e(f"buffer_store_dword v{V_STAMP[0]}, v1, s[60:63], s58 offen")

def srd(d, lo, nbytes):
    e(f"s_mov_b32 s{d}, s{lo}")
    e(f"s_and_b32 s{d+1}, s{lo+1}, 0xffff")
    e(f"s_mov_b32 s{d+2}, {nbytes}")
    e(f"s_mov_b32 s{d+3}, 0x00020000")

XB, QB, LB, OB = 2048 * 1024 * 2, 1024 * 3584 * 4, 8 * 3584 * 2, 2048 * 3584 * 2

out.append(f"""; fused SqueezeLLM LUT dequant + bf16 MFMA GEMM, 256x112 tile per workgroup, 4 consumer + 4 producer waves
; @launch grid=(256,1,1) block=(512,1,1) lds={LDS}
.amdgcn_target "amdgcn-amd-amdhsa--gfx950"
.text
.globl {NAME}_kernel
.p2align 8
.type {NAME}_kernel,@function
{NAME}_kernel:""")

e("s_cmp_ge_u32 s2, 256")
e("s_cbranch_scc1 L_end")
e("s_load_dwordx8 s[4:11], s[0:1], 0")
if opts["dbg"]:
    e("s_memtime s[72:73]")
    e("s_memrealtime s[74:75]")
if opts["diag"]:
    e(f"s_mov_b32 s{S_SI}, 1")
    stamp()
e(f"s_and_b32 s{S_MT}, s2, 7")
e(f"s_lshr_b32 s{S_NT}, s2, 3")
e(f"s_and_b32 s{S_NT}, s{S_NT}, 3")
e(f"s_lshl_b32 s{S_MT}, s{S_MT}, 2")
e(f"s_add_u32 s{S_NT}, s{S_NT}, s{S_MT}")
e(f"s_lshr_b32 s{S_MT}, s2, 5")
e(f"s_lshl_b32 s{S_M0}, s{S_MT}, 8")
e(f"s_mul_i32 s{S_N0}, s{S_NT}, 112")
e("v_lshrrev_b32 v1, 6, v0")
e("v_and_b32 v0, 63, v0")
e(f"s_mov_b32 s{S_C0}, 0x05010400")
e(f"v_readfirstlane_b32 s{S_WAVE}, v1")
e(f"s_mov_b32 s{S_C1}, 0x07030602")
e(f"s_mov_b32 s{S_C2}, 0x05040100")
e(f"s_mov_b32 s{S_C3}, 0x07060302")
e(f"s_and_b32 s{S_PW}, s{S_WAVE}, 3")
V_XOFF = 24
e("v_lshrrev_b32 v3, 3, v0")
e("v_and_b32 v4, 7, v0")
e("v_lshrrev_b32 v5, 4, v0")
e("v_xor_b32 v4, v4, v5")
e("v_lshlrev_b32 v4, 4, v4")
e("v_lshl_add_u32 v3, v3, 11, v4")
e(f"s_lshl_b32 s{S_TMP}, s{S_PW}, 6")
e(f"s_add_u32 s{S_TMP}, s{S_TMP}, s{S_M0}")
e(f"s_lshl_b32 s{S_TMP}, s{S_TMP}, 11")
e(f"v_add_u32 v3, s{S_TMP}, v3")
e("v_xor_b32 v4, 64, v3")
for i in range(8):
    src = 4 if (i & 1) else 3
    e(f"v_add_u32 v{V_XOFF+i}, {i*16384 - (i&3)*1024}, v{src}")
e(f"s_lshl_b32 s{S_M0B}, s{S_PW}, 13")
e(f"s_cmp_ge_u32 s{S_WAVE}, 4")
e("s_cbranch_scc1 L_producer")

V_A = 2
V_B = 6
V_B6 = 10
V_OUT = 12
V_EW = 13
V_EW6 = 14
V_ER = 15
X = [32, 76]
W = [48, 92]
ACC = 128
CVT = 32
ERS = 240
V_PQO, V_PXO, V_PD = 240, 241, 244
def acc(t, mt):
    return ACC + (t * 4 + mt) * 4

if opts["cpf"]:
    e(f"s_getpc_b64 s[{S_PC}:{S_PC+1}]")
    lab("L_pc")
    e(f"s_sub_u32 s{S_PC}, s{S_PC}, L_pc-{NAME}_kernel")
    e(f"s_subb_u32 s{S_PC+1}, s{S_PC+1}, 0")
    e(f"s_lshl_b32 s{S_TMP}, s{S_WAVE}, 10")
    e("v_lshlrev_b32 v2, 4, v0")
    e(f"v_add_u32 v2, s{S_TMP}, v2")
    for k in range(opts["cpf"]):
        e(f"v_min_u32 v3, L_codeend-{NAME}_kernel-16, v2")
        e(f"global_load_dwordx4 v[{V_PD}:{V_PD+3}], v3, s[{S_PC}:{S_PC+1}]")
        e("v_add_u32 v2, 0x1000, v2")
if opts["prio_c"]:
    e(f"s_setprio {opts['prio_c']}")
e("s_waitcnt lgkmcnt(0)")
srd(S_X, 4, XB)
if opts["diag"]:
    e(f"v_mov_b32 v{V_STAMP[0]}, s{S_ST}")
if opts["coop"]:
    srd(S_Q, 6, QB)
    e(f"s_lshr_b32 s{S_TMP}, s2, 3")
    e(f"s_lshl_b32 s{S_TMP}, s{S_TMP}, 1")
    e(f"s_lshr_b32 s{S_TMP2}, s{S_WAVE}, 1")
    e(f"s_add_u32 s{S_TMP}, s{S_TMP}, s{S_TMP2}")
    e(f"s_mul_i32 s{S_TMP}, s{S_TMP}, 14336")
    e(f"s_and_b32 s{S_TMP2}, s2, 7")
    e(f"s_mul_i32 s{S_TMP2}, s{S_TMP2}, 1792")
    e(f"s_add_u32 s{S_TMP}, s{S_TMP}, s{S_TMP2}")
    e(f"s_and_b32 s{S_TMP2}, s{S_WAVE}, 1")
    e(f"s_mul_i32 s{S_TMP2}, s{S_TMP2}, 896")
    e(f"s_add_u32 s{S_BQ}, s{S_TMP}, s{S_TMP2}")
    e("v_lshlrev_b32 v1, 4, v0")
    e("v_bfrev_b32 v2, 1")
    e("v_cmp_gt_u32 vcc, 56, v0")
    e("v_lshrrev_b32 v3, 3, v0")
    e("v_lshlrev_b32 v3, 11, v3")
    e(f"v_cndmask_b32 v{V_PQO}, v2, v1, vcc")
    e("v_and_b32 v2, 7, v0")
    e(f"v_lshl_add_u32 v{V_PXO}, v2, 4, v3")
    e(f"s_lshl_b32 s{S_BX}, s2, 14")
    e(f"s_lshl_b32 s{S_TMP}, s{S_WAVE}, 7")
    e(f"s_add_u32 s{S_BX}, s{S_BX}, s{S_TMP}")
    for st_ in range(opts["coop"]):
        e(f"buffer_load_dwordx4 v[{V_PD}:{V_PD+3}], v{V_PQO}, s[{S_Q}:{S_Q+3}], s{S_BQ} offen")
        e(f"s_add_u32 s{S_BQ}, s{S_BQ}, {64*14336}")
        if st_ % 4 == 0:
            if st_ + 4 > opts["coop"]:
                e(f"s_cmp_ge_u32 s{S_WAVE}, {opts['coop'] - st_}")
                e(f"s_cbranch_scc1 L_cx{st_}")
            e(f"buffer_load_dwordx4 v[{V_PD}:{V_PD+3}], v{V_PXO}, s[{S_X}:{S_X+3}], s{S_BX} offen offset:{st_*128}")
            lab(f"L_cx{st_}")
    e("s_waitcnt vmcnt(0)")
    e("s_barrier")
for stg in range(2):
    e(f"s_mov_b32 s{S_XOFF}, {stg*128}")
    for i in range(8):
        if i % 4 == 0:
            e(f"s_add_u32 m0, s{S_M0B}, {stg*A_SLOT + (i//4)*4096}")
            e("s_nop 0")
        e(f"buffer_load_dwordx4 v{V_XOFF+i}, s[{S_X}:{S_X+3}], s{S_XOFF} offen offset:{(i&3)*1024} lds")
e(f"s_mov_b32 s{S_XOFF}, 256")
e(f"s_add_u32 m0, s{S_M0B}, {2*A_SLOT}")
e("s_nop 0")
for i in range(4):
    e(f"buffer_load_dwordx4 v{V_XOFF+i}, s[{S_X}:{S_X+3}], s{S_XOFF} offen offset:{(i&3)*1024} lds")
srd(S_Q, 6, QB)
srd(S_O, 10, OB)
e(f"s_lshr_b32 s{S_TMP}, s2, 3")
e(f"s_lshr_b32 s{S_BSTEP}, s{S_TMP}, 1")
e(f"s_and_b32 s{S_TMP}, s{S_TMP}, 1")
e(f"s_lshl_b32 s{S_BQ}, s{S_BSTEP}, 6")
e(f"s_lshl_b32 s{S_TMP2}, s{S_TMP}, 5")
e(f"s_add_u32 s{S_BQ}, s{S_BQ}, s{S_TMP2}")
e(f"s_lshl_b32 s{S_TMP2}, s{S_WAVE}, 3")
e(f"s_add_u32 s{S_BQ}, s{S_BQ}, s{S_TMP2}")
e(f"s_mul_i32 s{S_BQ}, s{S_BQ}, 14336")
e(f"s_and_b32 s{S_TMP2}, s2, 7")
e(f"s_mul_i32 s{S_BX}, s{S_TMP2}, 1792")
e(f"s_add_u32 s{S_BQ}, s{S_BQ}, s{S_BX}")
e(f"s_lshl_b32 s{S_BX}, s{S_TMP2}, 1")
e(f"s_add_u32 s{S_BX}, s{S_BX}, s{S_TMP}")
e(f"s_lshl_b32 s{S_BX}, s{S_BX}, 2")
e(f"s_add_u32 s{S_BX}, s{S_BX}, s{S_WAVE}")
e(f"s_lshl_b32 s{S_BX}, s{S_BX}, 16")
e(f"s_lshl_b32 s{S_TMP2}, s{S_BSTEP}, 7")
e(f"s_add_u32 s{S_BX}, s{S_BX}, s{S_TMP2}")
e("v_lshlrev_b32 v1, 4, v0")
e("v_bfrev_b32 v2, 1")
e("v_cmp_gt_u32 vcc, 56, v0")
e("v_lshrrev_b32 v3, 3, v0")
e("v_lshlrev_b32 v3, 11, v3")
e(f"v_cndmask_b32 v{V_PQO}, v2, v1, vcc")
e("v_and_b32 v2, 7, v0")
e(f"v_lshl_add_u32 v{V_PXO}, v2, 4, v3")
e(f"s_cmp_lt_u32 s{S_BSTEP}, {opts['bmin']}")
e(f"s_cselect_b32 s{S_TMP}, 99, 0")
e(f"s_sub_i32 s{S_BSTEP}, s{S_BSTEP}, {opts['bd']}")
e(f"s_max_i32 s{S_BSTEP}, s{S_BSTEP}, 0")
e(f"s_add_u32 s{S_BSTEP}, s{S_BSTEP}, s{S_TMP}")
e(f"s_mov_b32 s{S_BCNT}, 0")
NBURST = 20
bcount = 0
def burst_check():
    global bcount
    bcount += 1
    e(f"s_cmp_lg_u32 s{S_BCNT}, s{S_BSTEP}")
    e(f"s_cbranch_scc1 L_bskip{bcount}")
    e(f"s_getpc_b64 s[{S_RET}:{S_RET+1}]")
    e(f"s_add_u32 s{S_RET}, s{S_RET}, 12")
    e(f"s_addc_u32 s{S_RET+1}, s{S_RET+1}, 0")
    e("s_branch L_burst")
    lab(f"L_bskip{bcount}")
    e(f"s_add_u32 s{S_BCNT}, s{S_BCNT}, 1")
burst_check()
e("v_and_b32 v110, 15, v0")
e("v_lshrrev_b32 v111, 4, v0")
e(f"s_lshl_b32 s{S_TMP}, s{S_WAVE}, 13")
e("v_lshrrev_b32 v1, 1, v110")
e("v_xor_b32 v1, v111, v1")
e("v_lshlrev_b32 v1, 4, v1")
e("v_lshl_add_u32 v104, v110, 7, v1")
e(f"v_add_u32 v{V_A}, s{S_TMP}, v104")
e(f"v_add_u32 v{V_A+1}, 0x10000, v{V_A}")
e(f"v_xor_b32 v{V_A+2}, 64, v{V_A}")
e(f"v_xor_b32 v{V_A+3}, 64, v{V_A+1}")
e(f"v_add_u32 v{V_B6}, {B_BASE + 96*128}, v104")
e(f"v_xor_b32 v{V_B6+1}, 64, v{V_B6}")
e("v_lshrrev_b32 v1, 2, v110")
e("v_and_b32 v105, 3, v110")
e("v_lshl_add_u32 v105, v1, 3, v105")
e("v_lshlrev_b32 v105, 7, v105")
e("v_lshlrev_b32 v1, 1, v1")
e("v_xor_b32 v1, v111, v1")
e("v_bfe_u32 v106, v110, 1, 1")
e("v_xor_b32 v1, v1, v106")
e("v_lshl_add_u32 v105, v1, 4, v105")
e(f"v_add_u32 v{V_B}, {B_BASE}, v105")
e(f"v_xor_b32 v1, 16, v{V_B}")
e(f"v_add_u32 v{V_B+1}, 512, v1")
e(f"v_xor_b32 v{V_B+2}, 64, v{V_B}")
e(f"v_xor_b32 v{V_B+3}, 64, v{V_B+1}")
e(f"s_lshl_b32 s{S_TMP}, s{S_WAVE}, 14")
e(f"v_mul_u32_u24 v1, {ERS}, v110")
e(f"v_add_u32 v1, s{S_TMP}, v1")
e(f"v_lshl_add_u32 v{V_EW}, v111, 4, v1")
e(f"v_lshl_add_u32 v{V_EW6}, v111, 3, v1")
e("v_mul_u32_u24 v1, 4682, v0")
e("v_lshrrev_b32 v1, 16, v1")
e("v_mul_u32_u24 v105, 14, v1")
e("v_sub_u32 v105, v0, v105")
e(f"v_mul_u32_u24 v106, {ERS}, v1")
e("v_lshl_add_u32 v106, v105, 4, v106")
e(f"v_add_u32 v{V_ER}, s{S_TMP}, v106")
e(f"s_lshl_b32 s{S_TMP}, s{S_WAVE}, 6")
e(f"s_add_u32 s{S_TMP}, s{S_TMP}, s{S_M0}")
e(f"v_add_u32 v1, s{S_TMP}, v1")
e("v_mul_u32_u24 v1, 7168, v1")
e(f"s_lshl_b32 s{S_TMP2}, s{S_N0}, 1")
e(f"v_add_u32 v1, s{S_TMP2}, v1")
e(f"v_lshl_add_u32 v{V_OUT}, v105, 4, v1")
e("v_cmp_gt_u32 vcc, 56, v0")
e("v_bfrev_b32 v1, 1")
e("s_nop 0")
e(f"v_cndmask_b32 v{V_OUT}, v1, v{V_OUT}, vcc")
e(f"v_cndmask_b32 v{V_ER}, v{V_EW}, v{V_ER}, vcc")
for r in range(112):
    e(f"v_mov_b32 v{ACC+r}, 0")
e(f"s_cmp_eq_u32 s{S_BSTEP}, 0")
e("s_cbranch_scc1 L_cw1")
e("s_waitcnt vmcnt(4)")
e("s_branch L_cw2")
lab("L_cw1")
e(f"s_waitcnt vmcnt({NBURST+4})")
lab("L_cw2")

def c_reads(slotA, slotB, kh, st):
    r = []
    va = V_A + kh * 2 + (slotA >> 1)
    ao = (slotA & 1) * 32768
    bo = slotB * B_SLOT
    def xr(mt):
        return f"ds_read_b128 v[{X[st]+mt*4}:{X[st]+mt*4+3}], v{va} offset:{ao + mt*2048}"
    def wr(t):
        if t < 6:
            return f"ds_read_b128 v[{W[st]+t*4}:{W[st]+t*4+3}], v{V_B + kh*2 + (t&1)} offset:{bo + (t>>1)*4096}"
        return f"ds_read_b128 v[{W[st]+t*4}:{W[st]+t*4+3}], v{V_B6 + kh} offset:{bo}"
    r.append(wr(0))
    for mt in range(4):
        r.append(xr(mt))
    for t in range(1, 7):
        r.append(wr(t))
    return r

def mfma(t, mt, st):
    a = acc(t, mt)
    return f"v_mfma_f32_16x16x32_bf16 v[{a}:{a+3}], v[{W[st]+t*4}:{W[st]+t*4+3}], v[{X[st]+mt*4}:{X[st]+mt*4+3}], v[{a}:{a+3}]"

def c_phase(st, reads, dma, commit=False, endwait=None):
    idx = 0
    dpos = [opts["dpos"] + k * opts["dgap"] for k in range(4)]
    for t in range(7):
        for mt in range(4):
            e(mfma(t, mt, st))
            if idx < len(reads):
                e(reads[idx])
            if dma is not None:
                slot, half = dma
                if idx == dpos[0] - 1:
                    e(f"s_add_u32 m0, s{S_M0B}, {slot*A_SLOT + half*4096}")
                if idx in dpos:
                    k = dpos.index(idx)
                    i = half * 4 + k
                    e(f"buffer_load_dwordx4 v{V_XOFF+i}, s[{S_X}:{S_X+3}], s{S_XOFF} offen offset:{k*1024} lds")
                    if k == 3 and half == 1:
                        e(f"s_add_u32 s{S_XOFF}, s{S_XOFF}, 128")
            idx += 1
    if endwait is not None:
        e(f"s_waitcnt vmcnt({endwait}) lgkmcnt(0)")
    else:
        e("s_waitcnt lgkmcnt(0)")
    if commit:
        stamp_commit()

assert 15 - opts["bd"] <= 12
e("s_barrier")
stamp()
for r in c_reads(0, 0, 0, 0):
    e(r)
e(f"s_mov_b32 s{S_LOOP}, 0")
e("s_waitcnt lgkmcnt(0)")
stamp_commit()
lab("L_cloop")
for u in range(4):
    c_phase(0, c_reads(u % NA, u % NB, 1, 1), ((u + 2) % NA, 1), endwait=8)
    e("s_barrier")
    stamp()
    burst_check()
    c_phase(1, c_reads((u + 1) % NA, (u + 1) % NB, 0, 0), ((u + 3) % NA, 0), True)
e(f"s_add_u32 s{S_LOOP}, s{S_LOOP}, 1")
e(f"s_cmp_lt_u32 s{S_LOOP}, 3")
e("s_cbranch_scc1 L_cloop")
for s in range(12, 16):
    u = s % 4
    c_phase(0, c_reads(u % NA, u % NB, 1, 1), ((u + 2) % NA, 1) if s + 2 < 16 else None,
            endwait=(8 if s <= 13 else (0 if s == 14 else None)))
    if s < 15:
        e("s_barrier")
        stamp()
        c_phase(1, c_reads((u + 1) % NA, (u + 1) % NB, 0, 0), ((u + 3) % NA, 0) if s + 3 < 16 else None, True)
stamp_now()
stf = ["", " nt", " sc1", " sc0 sc1"][opts["stflag"]]
lq = []
def lds(tag, ins):
    e(ins); lq.append(tag)
def lwait(tag):
    n = len(lq) - 1 - max(i for i, t in enumerate(lq) if t == tag)
    assert n <= 15
    e(f"s_waitcnt lgkmcnt({n})")
CV = 48
cvi = [0]
def cvt_group(mt, T):
    c = CV + (cvi[0] % 6) * 4
    cvi[0] += 1
    if T < 3:
        a, b = acc(2 * T, mt), acc(2 * T + 1, mt)
        e(f"v_cvt_pk_bf16_f32 v{c}, v{a}, v{a+1}")
        e(f"v_cvt_pk_bf16_f32 v{c+1}, v{a+2}, v{a+3}")
        e(f"v_cvt_pk_bf16_f32 v{c+2}, v{b}, v{b+1}")
        e(f"v_cvt_pk_bf16_f32 v{c+3}, v{b+2}, v{b+3}")
        lds(("w", mt), f"ds_write_b128 v{V_EW}, v[{c}:{c+3}] offset:{mt*16*ERS + T*64}")
    else:
        a = acc(6, mt)
        e(f"v_cvt_pk_bf16_f32 v{c}, v{a}, v{a+1}")
        e(f"v_cvt_pk_bf16_f32 v{c+1}, v{a+2}, v{a+3}")
        lds(("w", mt), f"ds_write_b64 v{V_EW6}, v[{c}:{c+1}] offset:{mt*16*ERS + 192}")
def rb_read(mt):
    lwait(("w", mt))
    for k in range(4):
        r = 16 + (mt & 1) * 16 + k * 4
        lds(("r", mt, k), f"ds_read_b128 v[{r}:{r+3}], v{V_ER} offset:{(mt*4+k)*4*ERS}")
def rb_store(mt, k):
    lwait(("r", mt, k))
    r = 16 + (mt & 1) * 16 + k * 4
    e(f"s_mov_b32 s{S_OOFF}, {(mt*4+k)*4*7168}")
    e(f"buffer_store_dwordx4 v[{r}:{r+3}], v{V_OUT}, s[{S_O}:{S_O+3}], s{S_OOFF} offen{stf}")
for mt in range(4):
    for t in range(7):
        e(mfma(t, mt, 1))
        if mt >= 2 and t == 0:
            rb_read(mt - 2)
        if mt >= 1 and 2 <= t <= 5:
            cvt_group(mt - 1, t - 2)
        if mt >= 2 and t >= 3:
            rb_store(mt - 2, t - 3)
rb_read(2)
e("s_nop 4")
for T in range(4):
    cvt_group(3, T)
    rb_store(2, T)
rb_read(3)
for k in range(4):
    rb_store(3, k)
stamp_flush()
if opts["dbg"]:
    e("s_mov_b64 exec, -1")
    e("s_load_dwordx2 s[56:57], s[0:1], 32")
    e("s_waitcnt vmcnt(0) lgkmcnt(0)")
    e("s_memtime s[68:69]")
    e("s_memrealtime s[70:71]")
    e("s_waitcnt lgkmcnt(0)")
    e("s_sub_u32 s68, s68, s72")
    e("s_sub_u32 s70, s70, s74")
    e("s_mov_b32 s60, s56")
    e("s_and_b32 s61, s57, 0xffff")
    e("s_mov_b32 s62, 256")
    e("s_mov_b32 s63, 0x00020000")
    e(f"s_cmp_lg_u32 s{S_WAVE}, 0")
    e("s_cbranch_scc1 L_dbgdone")
    e("s_and_b32 s58, s2, 31")
    e("s_cmp_lg_u32 s58, 0")
    e("s_cbranch_scc1 L_dbgdone")
    e("s_lshr_b32 s58, s2, 5")
    e("s_lshl_b32 s58, s58, 3")
    e("v_mov_b32 v2, s68")
    e("v_mov_b32 v3, s70")
    e("v_mov_b32 v1, 0")
    e("s_mov_b64 exec, 1")
    e("buffer_store_dwordx2 v[2:3], v1, s[60:63], s58 offen")
    lab("L_dbgdone")
e("s_endpgm")
lab("L_burst")
for r in range(8):
    for hf in range(2):
        e(f"buffer_load_dwordx4 v[{V_PD}:{V_PD+3}], v{V_PQO}, s[{S_Q}:{S_Q+3}], s{S_BQ} offen offset:{hf*896}")
    e(f"s_add_u32 s{S_BQ}, s{S_BQ}, 14336")
    if r % 2 == 1:
        e(f"buffer_load_dwordx4 v[{V_PD}:{V_PD+3}], v{V_PXO}, s[{S_X}:{S_X+3}], s{S_BX} offen")
        e(f"s_add_u32 s{S_BX}, s{S_BX}, 16384")
e(f"s_setpc_b64 s[{S_RET}:{S_RET+1}]")

lab("L_producer")
V_STAMP[0] = 124
V_QOFF = 16
V_W = 32
V_LOFF = 34
V_LO0, V_LO1, V_HI0, V_HI1 = 36, 40, 44, 48
V_SEL = 52
V_PT = 60
V_OUTB = 76
V_T = 92
V_LH = 108
V_Q = 128

if opts["ps"]:
    e("s_setprio 3")
e("v_lshrrev_b32 v1, 5, v0")
e("v_and_b32 v2, 31, v0")
e("v_cmp_gt_u32 vcc, 28, v2")
e("v_bfrev_b32 v6, 1")
e(f"s_mul_i32 s{S_TMP}, s{S_PW}, 229376")
e(f"s_lshl_b32 s{S_TMP2}, s{S_N0}, 2")
e(f"s_add_u32 s{S_TMP}, s{S_TMP}, s{S_TMP2}")
e("v_mul_u32_u24 v3, 114688, v1")
e("v_lshl_add_u32 v3, v2, 4, v3")
e(f"v_add_u32 v3, s{S_TMP}, v3")
e(f"v_cndmask_b32 v{V_QOFF}, v6, v3, vcc")
for kk in range(1, 8):
    e(f"v_add_u32 v{V_QOFF+kk}, {kk*14336}, v{V_QOFF}")
e(f"s_lshl_b32 s{S_TMP2}, s{S_N0}, 1")
e("v_lshlrev_b32 v3, 3, v2")
e(f"v_add_u32 v3, s{S_TMP2}, v3")
if opts["lswap"]:
    e("v_mul_u32_u24 v4, 28672, v1")
    e("v_add_u32 v3, v3, v4")
e(f"v_cndmask_b32 v{V_LOFF}, v6, v3, vcc")
e(f"s_mov_b32 s{S_XOFF}, 256")
e(f"s_mov_b32 s{S_QOFF}, 0")
e("s_waitcnt lgkmcnt(0)")
srd(S_L, 8, LB)
srd(S_Q, 6, QB)
if opts["diag"]:
    e(f"v_mov_b32 v{V_STAMP[0]}, s{S_ST}")

vm = []
def q_items(stage):
    base = V_Q + (stage % PQ) * 32
    it = []
    for kk in range(8):
        ins = [f"buffer_load_dwordx4 v[{base+kk*4}:{base+kk*4+3}], v{V_QOFF+kk}, s[{S_Q}:{S_Q+3}], s{S_QOFF} offen"]
        if kk == 7:
            ins.append(f"s_add_u32 s{S_QOFF}, s{S_QOFF}, {64*14336}")
        it.append((("q", stage), ins, None))
    return it
def a_items(stage):
    slot = stage % NA
    it = []
    for i in range(8):
        pre = None
        if i % 4 == 0:
            pre = f"s_add_u32 m0, s{S_M0B}, {slot*A_SLOT + (i//4)*4096}"
        ins = [f"buffer_load_dwordx4 v{V_XOFF+i}, s[{S_X}:{S_X+3}], s{S_XOFF} offen offset:{(i&3)*1024} lds"]
        if i == 7:
            ins.append(f"s_add_u32 s{S_XOFF}, s{S_XOFF}, 128")
        it.append((("a", stage), ins, pre))
    return it
def emit_item(item):
    tag, ins, pre = item
    if pre is not None:
        e(pre)
        e("s_nop 0")
    for s in ins:
        e(s)
    vm.append(tag)
def younger(tag):
    idx = [i for i, t in enumerate(vm) if t == tag]
    if not idx:
        return None
    return len(vm) - 1 - max(idx)

for l in range(4 if opts["lswap"] else 8):
    e(f"s_mov_b32 s{S_TMP}, {l*7168}")
    e(f"buffer_load_dwordx2 v[{V_T+2*l}:{V_T+2*l+1}], v{V_LOFF}, s[{S_L}:{S_L+3}], s{S_TMP} offen")
    vm.append("L")
if opts["coop"]:
    e("s_barrier")
for st_ in range(3):
    if opts["ps"] and st_ == opts["ps"]:
        e(f"s_setprio {opts['prio_p']}")
    for it in q_items(st_): emit_item(it)
srd(S_X, 4, XB)
e(f"s_lshl_b32 s{S_TMP}, s{S_PW}, 1")
e(f"v_add_u32 v3, s{S_TMP}, v1")
e("v_and_b32 v4, 7, v2")
e("v_lshlrev_b32 v5, 1, v2")
e("v_and_b32 v5, 7, v5")
e(f"v_cmp_gt_u32 s[{S_MASK}:{S_MASK+1}], 24, v2")
e("v_mov_b32 v7, 0x40000")
e("s_nop 0")
e(f"v_cndmask_b32 v4, v5, v4, s[{S_MASK}:{S_MASK+1}]")
e("v_xor_b32 v4, v3, v4")
e("v_lshlrev_b32 v4, 4, v4")
e("v_lshl_add_u32 v4, v2, 9, v4")
e(f"v_add_u32 v4, {B_BASE}, v4")
e(f"v_cndmask_b32 v{V_W}, v7, v4, vcc")
e(f"v_xor_b32 v4, 16, v{V_W}")
e(f"v_add_u32 v{V_W+1}, 256, v4")

e(f"s_waitcnt vmcnt({younger('L')})")
stamp_now()
if opts["lswap"]:
    for k in range(8):
        e(f"v_mov_b32 v{V_T+8+k}, v{V_T+k}")
    e("s_nop 1")
    for k in range(8):
        e(f"v_permlane32_swap_b32 v{V_T+k}, v{V_T+8+k}")
    e("s_nop 1")
for d in range(2):
    for hb in range(2):
        t0, t1, t2, t3 = [V_T + 2 * (4 * hb + k) + d for k in range(4)]
        lo = (V_LO0, V_LO1)[hb]
        hi = (V_HI0, V_HI1)[hb]
        for cc in range(2):
            sc = (S_C0, S_C1)[cc]
            col = 2 * d + cc
            e(f"v_perm_b32 v{V_PT}, v{t1}, v{t0}, s{sc}")
            e(f"v_perm_b32 v{V_PT+1}, v{t3}, v{t2}, s{sc}")
            e(f"v_perm_b32 v{lo+col}, v{V_PT+1}, v{V_PT}, s{S_C2}")
            e(f"v_perm_b32 v{hi+col}, v{V_PT+1}, v{V_PT}, s{S_C3}")

AL = opts["alead"]
sched = {-1: []}
for s in range(0, 15):
    g = []
    if s + 3 < NSTEP: g.append(("q", s + 3))
    sched[s] = g

def p_body(s):
    st = s + 1
    base = V_Q + (st % PQ) * 32
    Q = lambda kk, i: base + kk * 4 + i
    bo = (st % NB) * B_SLOT
    valu = []
    for hb in range(2):
        for i in range(4):
            valu.append(f"v_lshl_or_b32 v{V_PT+hb*8+i*2}, v{Q(4*hb+1,i)}, 8, v{Q(4*hb,i)}")
            valu.append(f"v_lshl_or_b32 v{V_PT+hb*8+i*2+1}, v{Q(4*hb+3,i)}, 8, v{Q(4*hb+2,i)}")
    for hb in range(2):
        for i in range(4):
            valu.append(f"v_lshl_or_b32 v{V_SEL+hb*4+i}, v{V_PT+hb*8+i*2+1}, 16, v{V_PT+hb*8+i*2}")
    for i in range(4):
        for hb in range(2):
            valu.append(f"v_perm_b32 v{V_LH+i*4+hb*2}, v{V_LO1+i}, v{V_LO0+i}, v{V_SEL+hb*4+i}")
            valu.append(f"v_perm_b32 v{V_LH+i*4+hb*2+1}, v{V_HI1+i}, v{V_HI0+i}, v{V_SEL+hb*4+i}")
    for i in range(4):
        for hb in range(2):
            valu.append(f"v_perm_b32 v{V_OUTB+i*4+hb*2}, v{V_LH+i*4+hb*2+1}, v{V_LH+i*4+hb*2}, s{S_C0}")
            valu.append(f"v_perm_b32 v{V_OUTB+i*4+hb*2+1}, v{V_LH+i*4+hb*2+1}, v{V_LH+i*4+hb*2}, s{S_C1}")
        valu.append(f"ds_write_b128 v{V_W+(i>>1)}, v[{V_OUTB+i*4}:{V_OUTB+i*4+3}] offset:{bo + (i&1)*128}")
    items = []
    for kind, stage in sched[s]:
        items += q_items(stage) if kind == "q" else a_items(stage)
    e(f"s_waitcnt vmcnt({younger(('q', st))})")
    n = len(items)
    nv = len(valu)
    if s == -1:
        pos = [nv] * n
    else:
        pos = [(k * nv) // n for k in range(n)]
    k = 0
    for vi in range(nv + 1):
        while k < n and pos[k] == vi:
            emit_item(items[k])
            k += 1
        if vi < nv:
            e(valu[vi])
    y = younger(("a", st))
    if y is None:
        e("s_waitcnt lgkmcnt(0)")
    else:
        e(f"s_waitcnt vmcnt({y}) lgkmcnt(0)")
    stamp_commit()
    e("s_barrier")
    stamp()

bodies = {}
for s in range(-1, 15):
    start = len(out)
    p_body(s)
    bodies[s] = out[start:]
    del out[start:]
for s in range(1, 5):
  for rep in (4, 8):
    a, b = bodies[s], bodies[s + rep]
    assert len(a) == len(b)
    for i in range(len(a)):
        if a[i] != b[i]:
            ma = re.match(r"(\s*s_waitcnt vmcnt\()(\d+)(\).*)", a[i])
            mb = re.match(r"(\s*s_waitcnt vmcnt\()(\d+)(\).*)", b[i])
            assert ma and mb and ma.group(3) == mb.group(3), (a[i], b[i])
            a[i] = ma.group(1) + str(min(int(ma.group(2)), int(mb.group(2)))) + ma.group(3)
stamp()
for s in range(-1, 1):
    out.extend(bodies[s])
e(f"s_mov_b32 s{S_LOOP}, 0")
lab("L_ploop")
for s in range(1, 5):
    out.extend(bodies[s])
e(f"s_add_u32 s{S_LOOP}, s{S_LOOP}, 1")
e(f"s_cmp_lt_u32 s{S_LOOP}, 3")
e("s_cbranch_scc1 L_ploop")
for s in range(13, 15):
    out.extend(bodies[s])
if opts["diag"]:
    e("s_waitcnt lgkmcnt(0)")
    stamp_commit()
    stamp_flush()
lab("L_end")
e("s_endpgm")
lab("L_codeend")

out.append(f""".section .rodata,"a"
.p2align 6
.amdhsa_kernel {NAME}_kernel
  .amdhsa_next_free_vgpr 256
  .amdhsa_next_free_sgpr 80
  .amdhsa_accum_offset 256
  .amdhsa_group_segment_fixed_size 0
  .amdhsa_kernarg_size 48
  .amdhsa_user_sgpr_count 2
  .amdhsa_user_sgpr_kernarg_segment_ptr 1
  .amdhsa_system_sgpr_workgroup_id_x 1
.end_amdhsa_kernel""")

open(sys.argv[1], "w").write("\n".join(out) + "\n")
```

```python
import sys, re

NAME = "standalone__weight_only_int_squeezellm__prompt"
NA = 4
NB = 2
PQ = 4
NSTEP = 16
A_SLOT = 32768
B_BASE = NA * A_SLOT
B_SLOT = 14336
LDS = B_BASE + NB * B_SLOT

opts = dict(prio_c=0, prio_p=0, diag=0, dbg=0, stflag=1, bd=5, cpf=4, alead=2, lswap=1, ord=0, bmin=4, ps=2, dpos=12, dgap=4, fe=1, coop=4, cpe=0, bparts=1, bgap=1, pb=0, alead3=0, qsp=0, bcp=11, w0=12, ns=1, swap=0)
for a in sys.argv[2:]:
    k, v = a.split("=")
    opts[k] = int(v)

out = []
def e(s):
    out.append("    " + s)
def lab(s):
    out.append(s + ":")

S_X, S_Q, S_L, S_O = 12, 16, 20, 24
S_MT, S_NT, S_M0, S_N0 = 28, 29, 30, 31
S_C0, S_C1, S_C2, S_C3 = 32, 33, 34, 35
S_WAVE = 36
S_PW = 37
S_MASK = 38
S_QOFF = 40
S_XOFF = 41
S_TMP = 42
S_TMP2 = 43
S_OOFF = 44
S_BSTEP, S_BCNT, S_BQ = 45, 46, 47
S_LOOP = 48
S_M0B = 49
S_RET = 50
S_ST = 52
S_SI = 54
S_BX = 55
S_PC = 64
V_STAMP = [250]
def stamp():
    if not opts["diag"]: return
    e(f"s_memtime s[{S_ST}:{S_ST+1}]")
def stamp_commit():
    if not opts["diag"]: return
    e(f"v_cmp_eq_u32 vcc, s{S_SI}, v0")
    e(f"v_mov_b32 v{V_STAMP[0]+1}, s{S_ST}")
    e("s_nop 0")
    e(f"v_cndmask_b32 v{V_STAMP[0]}, v{V_STAMP[0]}, v{V_STAMP[0]+1}, vcc")
    e(f"s_add_u32 s{S_SI}, s{S_SI}, 1")
def stamp_now():
    if not opts["diag"]: return
    stamp()
    e("s_waitcnt lgkmcnt(0)")
    stamp_commit()
def stamp_flush():
    if not opts["diag"]: return
    e("s_mov_b64 exec, -1")
    e("s_load_dwordx2 s[56:57], s[0:1], 40")
    e("s_waitcnt vmcnt(0) lgkmcnt(0)")
    stamp_now()
    e("s_mov_b32 s60, s56")
    e("s_and_b32 s61, s57, 0xffff")
    e("s_mov_b32 s62, 0x100000")
    e("s_mov_b32 s63, 0x00020000")
    e(f"s_lshl_b32 s58, s2, 3")
    e(f"s_add_u32 s58, s58, s{S_WAVE}")
    e("s_lshl_b32 s58, s58, 8")
    e("v_lshlrev_b32 v1, 2, v0")
    e(f"buffer_store_dword v{V_STAMP[0]}, v1, s[60:63], s58 offen")

def srd(d, lo, nbytes):
    e(f"s_mov_b32 s{d}, s{lo}")
    e(f"s_and_b32 s{d+1}, s{lo+1}, 0xffff")
    e(f"s_mov_b32 s{d+2}, {nbytes}")
    e(f"s_mov_b32 s{d+3}, 0x00020000")

XB, QB, LB, OB = 2048 * 1024 * 2, 1024 * 3584 * 4, 8 * 3584 * 2, 2048 * 3584 * 2

out.append(f"""; fused SqueezeLLM LUT dequant + bf16 MFMA GEMM, 256x112 tile per workgroup, 4 consumer + 4 producer waves
; @launch grid=(256,1,1) block=(512,1,1) lds={LDS}
.amdgcn_target "amdgcn-amd-amdhsa--gfx950"
.text
.globl {NAME}_kernel
.p2align 8
.type {NAME}_kernel,@function
{NAME}_kernel:""")

e("s_cmp_ge_u32 s2, 256")
e("s_cbranch_scc1 L_end")
e("s_load_dwordx8 s[4:11], s[0:1], 0")
if opts["cpe"]:
    e(f"s_getpc_b64 s[{S_PC}:{S_PC+1}]")
    lab("L_pc0")
    e("v_lshlrev_b32 v2, 4, v0")
    e(f"s_sub_u32 s{S_PC}, s{S_PC}, L_pc0-{NAME}_kernel")
    e(f"s_subb_u32 s{S_PC+1}, s{S_PC+1}, 0")
    e(f"global_load_dwordx4 v[244:247], v2, s[{S_PC}:{S_PC+1}]")
    e("v_add_u32 v2, 0x2000, v2")
    e(f"v_min_u32 v3, L_codeend-{NAME}_kernel-16, v2")
    e(f"global_load_dwordx4 v[244:247], v3, s[{S_PC}:{S_PC+1}]")
if opts["dbg"]:
    e("s_memtime s[72:73]")
    e("s_memrealtime s[74:75]")
if opts["diag"]:
    e(f"s_mov_b32 s{S_SI}, 1")
    stamp()
e(f"s_and_b32 s{S_MT}, s2, 7")
e(f"s_lshr_b32 s{S_NT}, s2, 3")
e(f"s_and_b32 s{S_NT}, s{S_NT}, 3")
e(f"s_lshl_b32 s{S_MT}, s{S_MT}, 2")
e(f"s_add_u32 s{S_NT}, s{S_NT}, s{S_MT}")
e(f"s_lshr_b32 s{S_MT}, s2, 5")
e(f"s_lshl_b32 s{S_M0}, s{S_MT}, 8")
e(f"s_mul_i32 s{S_N0}, s{S_NT}, 112")
e("v_lshrrev_b32 v1, 6, v0")
e("v_and_b32 v0, 63, v0")
e(f"s_mov_b32 s{S_C0}, 0x05010400")
e(f"v_readfirstlane_b32 s{S_WAVE}, v1")
e(f"s_mov_b32 s{S_C1}, 0x07030602")
e(f"s_mov_b32 s{S_C2}, 0x05040100")
e(f"s_mov_b32 s{S_C3}, 0x07060302")
if opts["swap"]:
    e(f"s_xor_b32 s{S_WAVE}, s{S_WAVE}, 4")
e(f"s_and_b32 s{S_PW}, s{S_WAVE}, 3")
V_XOFF = 24
e("v_lshrrev_b32 v3, 3, v0")
e("v_and_b32 v4, 7, v0")
e("v_lshrrev_b32 v5, 4, v0")
e("v_xor_b32 v4, v4, v5")
e("v_lshlrev_b32 v4, 4, v4")
e("v_lshl_add_u32 v3, v3, 11, v4")
e(f"s_lshl_b32 s{S_TMP}, s{S_PW}, 6")
e(f"s_add_u32 s{S_TMP}, s{S_TMP}, s{S_M0}")
e(f"s_lshl_b32 s{S_TMP}, s{S_TMP}, 11")
e(f"v_add_u32 v3, s{S_TMP}, v3")
e("v_xor_b32 v4, 64, v3")
for i in range(8):
    src = 4 if (i & 1) else 3
    e(f"v_add_u32 v{V_XOFF+i}, {i*16384 - (i&3)*1024}, v{src}")
e(f"s_lshl_b32 s{S_M0B}, s{S_PW}, 13")
e(f"s_cmp_ge_u32 s{S_WAVE}, 4")
e("s_cbranch_scc1 L_producer")

V_A = 2
V_B = 6
V_B6 = 10
V_OUT = 12
V_EW = 13
V_EW6 = 14
V_ER = 15
X = [32, 76]
W = [48, 92]
ACC = 128
CVT = 32
ERS = 240
V_PQO, V_PXO, V_PD = 240, 241, 244
def acc(t, mt):
    return ACC + (t * 4 + mt) * 4

if opts["cpf"] and not opts["cpe"]:
    e(f"s_getpc_b64 s[{S_PC}:{S_PC+1}]")
    lab("L_pc")
    e(f"s_sub_u32 s{S_PC}, s{S_PC}, L_pc-{NAME}_kernel")
    e(f"s_subb_u32 s{S_PC+1}, s{S_PC+1}, 0")
    e(f"s_lshl_b32 s{S_TMP}, s{S_WAVE}, 10")
    e("v_lshlrev_b32 v2, 4, v0")
    e(f"v_add_u32 v2, s{S_TMP}, v2")
    for k in range(opts["cpf"]):
        e(f"v_min_u32 v3, L_codeend-{NAME}_kernel-16, v2")
        e(f"global_load_dwordx4 v[{V_PD}:{V_PD+3}], v3, s[{S_PC}:{S_PC+1}]")
        e("v_add_u32 v2, 0x1000, v2")
if opts["prio_c"]:
    e(f"s_setprio {opts['prio_c']}")
e("s_waitcnt lgkmcnt(0)")
srd(S_X, 4, XB)
if opts["diag"]:
    e(f"v_mov_b32 v{V_STAMP[0]}, s{S_ST}")
if opts["coop"]:
    srd(S_Q, 6, QB)
    e(f"s_lshr_b32 s{S_TMP}, s2, 3")
    e(f"s_lshl_b32 s{S_TMP}, s{S_TMP}, 1")
    e(f"s_lshr_b32 s{S_TMP2}, s{S_WAVE}, 1")
    e(f"s_add_u32 s{S_TMP}, s{S_TMP}, s{S_TMP2}")
    e(f"s_mul_i32 s{S_TMP}, s{S_TMP}, 14336")
    e(f"s_and_b32 s{S_TMP2}, s2, 7")
    e(f"s_mul_i32 s{S_TMP2}, s{S_TMP2}, 1792")
    e(f"s_add_u32 s{S_TMP}, s{S_TMP}, s{S_TMP2}")
    e(f"s_and_b32 s{S_TMP2}, s{S_WAVE}, 1")
    e(f"s_mul_i32 s{S_TMP2}, s{S_TMP2}, 896")
    e(f"s_add_u32 s{S_BQ}, s{S_TMP}, s{S_TMP2}")
    e("v_lshlrev_b32 v1, 4, v0")
    e("v_bfrev_b32 v2, 1")
    e("v_cmp_gt_u32 vcc, 56, v0")
    e("v_lshrrev_b32 v3, 3, v0")
    e("v_lshlrev_b32 v3, 11, v3")
    e(f"v_cndmask_b32 v{V_PQO}, v2, v1, vcc")
    e("v_and_b32 v2, 7, v0")
    e(f"v_lshl_add_u32 v{V_PXO}, v2, 4, v3")
    e(f"s_lshl_b32 s{S_BX}, s2, 14")
    e(f"s_lshl_b32 s{S_TMP}, s{S_WAVE}, 7")
    e(f"s_add_u32 s{S_BX}, s{S_BX}, s{S_TMP}")
    for st_ in range(opts["coop"]):
        e(f"buffer_load_dwordx4 v[{V_PD}:{V_PD+3}], v{V_PQO}, s[{S_Q}:{S_Q+3}], s{S_BQ} offen")
        e(f"s_add_u32 s{S_BQ}, s{S_BQ}, {64*14336}")
        if st_ % 4 == 0:
            if st_ + 4 > opts["coop"]:
                e(f"s_cmp_ge_u32 s{S_WAVE}, {opts['coop'] - st_}")
                e(f"s_cbranch_scc1 L_cx{st_}")
            e(f"buffer_load_dwordx4 v[{V_PD}:{V_PD+3}], v{V_PXO}, s[{S_X}:{S_X+3}], s{S_BX} offen offset:{st_*128}")
            lab(f"L_cx{st_}")
    e("s_waitcnt vmcnt(0)")
    e("s_barrier")
for stg in range(2):
    e(f"s_mov_b32 s{S_XOFF}, {stg*128}")
    for i in range(8):
        if i % 4 == 0:
            e(f"s_add_u32 m0, s{S_M0B}, {stg*A_SLOT + (i//4)*4096}")
            e("s_nop 0")
        e(f"buffer_load_dwordx4 v{V_XOFF+i}, s[{S_X}:{S_X+3}], s{S_XOFF} offen offset:{(i&3)*1024} lds")
e(f"s_mov_b32 s{S_XOFF}, 256")
e(f"s_add_u32 m0, s{S_M0B}, {2*A_SLOT}")
e("s_nop 0")
for i in range(4):
    e(f"buffer_load_dwordx4 v{V_XOFF+i}, s[{S_X}:{S_X+3}], s{S_XOFF} offen offset:{(i&3)*1024} lds")
srd(S_Q, 6, QB)
srd(S_O, 10, OB)
e(f"s_lshr_b32 s{S_TMP}, s2, 3")
e(f"s_lshr_b32 s{S_BSTEP}, s{S_TMP}, 1")
e(f"s_and_b32 s{S_TMP}, s{S_TMP}, 1")
e(f"s_lshl_b32 s{S_BQ}, s{S_BSTEP}, 6")
e(f"s_lshl_b32 s{S_TMP2}, s{S_TMP}, 5")
e(f"s_add_u32 s{S_BQ}, s{S_BQ}, s{S_TMP2}")
e(f"s_lshl_b32 s{S_TMP2}, s{S_WAVE}, 3")
e(f"s_add_u32 s{S_BQ}, s{S_BQ}, s{S_TMP2}")
e(f"s_mul_i32 s{S_BQ}, s{S_BQ}, 14336")
e(f"s_and_b32 s{S_TMP2}, s2, 7")
e(f"s_mul_i32 s{S_BX}, s{S_TMP2}, 1792")
e(f"s_add_u32 s{S_BQ}, s{S_BQ}, s{S_BX}")
e(f"s_lshl_b32 s{S_BX}, s{S_TMP2}, 1")
e(f"s_add_u32 s{S_BX}, s{S_BX}, s{S_TMP}")
e(f"s_lshl_b32 s{S_BX}, s{S_BX}, 2")
e(f"s_add_u32 s{S_BX}, s{S_BX}, s{S_WAVE}")
e(f"s_lshl_b32 s{S_BX}, s{S_BX}, 16")
e(f"s_lshl_b32 s{S_TMP2}, s{S_BSTEP}, 7")
e(f"s_add_u32 s{S_BX}, s{S_BX}, s{S_TMP2}")
e("v_lshlrev_b32 v1, 4, v0")
e("v_bfrev_b32 v2, 1")
e("v_cmp_gt_u32 vcc, 56, v0")
e("v_lshrrev_b32 v3, 3, v0")
e("v_lshlrev_b32 v3, 11, v3")
e(f"v_cndmask_b32 v{V_PQO}, v2, v1, vcc")
e("v_and_b32 v2, 7, v0")
e(f"v_lshl_add_u32 v{V_PXO}, v2, 4, v3")
e(f"s_cmp_lt_u32 s{S_BSTEP}, {opts['bmin']}")
e(f"s_cselect_b32 s{S_TMP}, 99, 0")
e(f"s_sub_i32 s{S_BSTEP}, s{S_BSTEP}, {opts['bd']}")
e(f"s_max_i32 s{S_BSTEP}, s{S_BSTEP}, 0")
e(f"s_add_u32 s{S_BSTEP}, s{S_BSTEP}, s{S_TMP}")
e(f"s_mov_b32 s{S_BCNT}, 0")
e("s_mov_b32 s71, 0")
e(f"s_mov_b32 s72, s{S_BSTEP}")
NBURST = 20 // opts["bparts"]
bcount = 0
def burst_check():
    global bcount
    if opts["pb"]: return
    bcount += 1
    e(f"s_cmp_lg_u32 s{S_BCNT}, s{S_BSTEP}")
    e(f"s_cbranch_scc1 L_bskip{bcount}")
    e(f"s_getpc_b64 s[{S_RET}:{S_RET+1}]")
    e(f"s_add_u32 s{S_RET}, s{S_RET}, 12")
    e(f"s_addc_u32 s{S_RET+1}, s{S_RET+1}, 0")
    e("s_branch L_burst")
    lab(f"L_bskip{bcount}")
    e(f"s_add_u32 s{S_BCNT}, s{S_BCNT}, 1")
burst_check()
e("v_and_b32 v110, 15, v0")
e("v_lshrrev_b32 v111, 4, v0")
e(f"s_lshl_b32 s{S_TMP}, s{S_WAVE}, 13")
e("v_lshrrev_b32 v1, 1, v110")
e("v_xor_b32 v1, v111, v1")
e("v_lshlrev_b32 v1, 4, v1")
e("v_lshl_add_u32 v104, v110, 7, v1")
e(f"v_add_u32 v{V_A}, s{S_TMP}, v104")
e(f"v_add_u32 v{V_A+1}, 0x10000, v{V_A}")
e(f"v_xor_b32 v{V_A+2}, 64, v{V_A}")
e(f"v_xor_b32 v{V_A+3}, 64, v{V_A+1}")
e(f"v_add_u32 v{V_B6}, {B_BASE + 96*128}, v104")
e(f"v_xor_b32 v{V_B6+1}, 64, v{V_B6}")
e("v_lshrrev_b32 v1, 2, v110")
e("v_and_b32 v105, 3, v110")
e("v_lshl_add_u32 v105, v1, 3, v105")
e("v_lshlrev_b32 v105, 7, v105")
e("v_lshlrev_b32 v1, 1, v1")
e("v_xor_b32 v1, v111, v1")
e("v_bfe_u32 v106, v110, 1, 1")
e("v_xor_b32 v1, v1, v106")
e("v_lshl_add_u32 v105, v1, 4, v105")
e(f"v_add_u32 v{V_B}, {B_BASE}, v105")
e(f"v_xor_b32 v1, 16, v{V_B}")
e(f"v_add_u32 v{V_B+1}, 512, v1")
e(f"v_xor_b32 v{V_B+2}, 64, v{V_B}")
e(f"v_xor_b32 v{V_B+3}, 64, v{V_B+1}")
e(f"s_lshl_b32 s{S_TMP}, s{S_WAVE}, 14")
e(f"v_mul_u32_u24 v1, {ERS}, v110")
e(f"v_add_u32 v1, s{S_TMP}, v1")
e(f"v_lshl_add_u32 v{V_EW}, v111, 4, v1")
e(f"v_lshl_add_u32 v{V_EW6}, v111, 3, v1")
e("v_mul_u32_u24 v1, 4682, v0")
e("v_lshrrev_b32 v1, 16, v1")
e("v_mul_u32_u24 v105, 14, v1")
e("v_sub_u32 v105, v0, v105")
e(f"v_mul_u32_u24 v106, {ERS}, v1")
e("v_lshl_add_u32 v106, v105, 4, v106")
e(f"v_add_u32 v{V_ER}, s{S_TMP}, v106")
e(f"s_lshl_b32 s{S_TMP}, s{S_WAVE}, 6")
e(f"s_add_u32 s{S_TMP}, s{S_TMP}, s{S_M0}")
e(f"v_add_u32 v1, s{S_TMP}, v1")
e("v_mul_u32_u24 v1, 7168, v1")
e(f"s_lshl_b32 s{S_TMP2}, s{S_N0}, 1")
e(f"v_add_u32 v1, s{S_TMP2}, v1")
e(f"v_lshl_add_u32 v{V_OUT}, v105, 4, v1")
e("v_cmp_gt_u32 vcc, 56, v0")
e("v_bfrev_b32 v1, 1")
e("s_nop 0")
e(f"v_cndmask_b32 v{V_OUT}, v1, v{V_OUT}, vcc")
e(f"v_cndmask_b32 v{V_ER}, v{V_EW}, v{V_ER}, vcc")
for r in range(112):
    e(f"v_mov_b32 v{ACC+r}, 0")
if opts["pb"]:
    e("s_mov_b32 s72, 1")
e(f"s_cmp_eq_u32 s72, 0")
e("s_cbranch_scc1 L_cw1")
e(f"s_waitcnt vmcnt({opts['w0']})")
e("s_branch L_cw2")
lab("L_cw1")
e(f"s_waitcnt vmcnt({NBURST+opts['w0']})")
lab("L_cw2")

def c_reads(slotA, slotB, kh, st):
    r = []
    va = V_A + kh * 2 + (slotA >> 1)
    ao = (slotA & 1) * 32768
    bo = slotB * B_SLOT
    def xr(mt):
        return f"ds_read_b128 v[{X[st]+mt*4}:{X[st]+mt*4+3}], v{va} offset:{ao + mt*2048}"
    def wr(t):
        if t < 6:
            return f"ds_read_b128 v[{W[st]+t*4}:{W[st]+t*4+3}], v{V_B + kh*2 + (t&1)} offset:{bo + (t>>1)*4096}"
        return f"ds_read_b128 v[{W[st]+t*4}:{W[st]+t*4+3}], v{V_B6 + kh} offset:{bo}"
    r.append(wr(0))
    for mt in range(4):
        r.append(xr(mt))
    for t in range(1, 7):
        r.append(wr(t))
    return r

def mfma(t, mt, st):
    a = acc(t, mt)
    return f"v_mfma_f32_16x16x32_bf16 v[{a}:{a+3}], v[{W[st]+t*4}:{W[st]+t*4+3}], v[{X[st]+mt*4}:{X[st]+mt*4+3}], v[{a}:{a+3}]"

def c_phase(st, reads, dma, commit=False, endwait=None, bc=False):
    idx = 0
    dpos = [opts["dpos"] + k * opts["dgap"] for k in range(4)]
    for t in range(7):
        for mt in range(4):
            e(mfma(t, mt, st))
            if idx < len(reads):
                e(reads[idx])
            if bc and idx == opts["bcp"] - 1:
                burst_check()
            if dma is not None:
                slot, half = dma
                if idx == dpos[0] - 1:
                    e(f"s_add_u32 m0, s{S_M0B}, {slot*A_SLOT + half*4096}")
                if idx in dpos:
                    k = dpos.index(idx)
                    i = half * 4 + k
                    e(f"buffer_load_dwordx4 v{V_XOFF+i}, s[{S_X}:{S_X+3}], s{S_XOFF} offen offset:{k*1024} lds")
                    if k == 3 and half == 1:
                        e(f"s_add_u32 s{S_XOFF}, s{S_XOFF}, 128")
            idx += 1
    if endwait is not None:
        e(f"s_waitcnt vmcnt({endwait}) lgkmcnt(0)")
    else:
        e("s_waitcnt lgkmcnt(0)")
    if commit:
        stamp_commit()

assert 15 - opts["bd"] + (opts["bparts"] - 1) * opts["bgap"] <= 12
e("s_barrier")
stamp()
for r in c_reads(0, 0, 0, 0):
    e(r)
e(f"s_mov_b32 s{S_LOOP}, 0")
e("s_waitcnt lgkmcnt(0)")
stamp_commit()
lab("L_cloop")
for u in range(4):
    c_phase(0, c_reads(u % NA, u % NB, 1, 1), ((u + 2) % NA, 1), endwait=8)
    e("s_barrier")
    stamp()
    if opts["bcp"] == 0:
        burst_check()
    c_phase(1, c_reads((u + 1) % NA, (u + 1) % NB, 0, 0), ((u + 3) % NA, 0), True, bc=opts["bcp"] > 0)
e(f"s_add_u32 s{S_LOOP}, s{S_LOOP}, 1")
e(f"s_cmp_lt_u32 s{S_LOOP}, 3")
e("s_cbranch_scc1 L_cloop")
for s in range(12, 16):
    u = s % 4
    c_phase(0, c_reads(u % NA, u % NB, 1, 1), ((u + 2) % NA, 1) if s + 2 < 16 else None,
            endwait=(8 if s <= 13 else (0 if s == 14 else None)))
    if s < 15:
        e("s_barrier")
        stamp()
        c_phase(1, c_reads((u + 1) % NA, (u + 1) % NB, 0, 0), ((u + 3) % NA, 0) if s + 3 < 16 else None, True)
stamp_now()
stf = ["", " nt", " sc1", " sc0 sc1"][opts["stflag"]]
lq = []
def lds(tag, ins):
    e(ins); lq.append(tag)
def lwait(tag):
    n = len(lq) - 1 - max(i for i, t in enumerate(lq) if t == tag)
    assert n <= 15
    e(f"s_waitcnt lgkmcnt({n})")
CV = 48
cvi = [0]
def cvt_group(mt, T):
    c = CV + (cvi[0] % 6) * 4
    cvi[0] += 1
    if T < 3:
        a, b = acc(2 * T, mt), acc(2 * T + 1, mt)
        e(f"v_cvt_pk_bf16_f32 v{c}, v{a}, v{a+1}")
        e(f"v_cvt_pk_bf16_f32 v{c+1}, v{a+2}, v{a+3}")
        e(f"v_cvt_pk_bf16_f32 v{c+2}, v{b}, v{b+1}")
        e(f"v_cvt_pk_bf16_f32 v{c+3}, v{b+2}, v{b+3}")
        lds(("w", mt), f"ds_write_b128 v{V_EW}, v[{c}:{c+3}] offset:{mt*16*ERS + T*64}")
    else:
        a = acc(6, mt)
        e(f"v_cvt_pk_bf16_f32 v{c}, v{a}, v{a+1}")
        e(f"v_cvt_pk_bf16_f32 v{c+1}, v{a+2}, v{a+3}")
        lds(("w", mt), f"ds_write_b64 v{V_EW6}, v[{c}:{c+1}] offset:{mt*16*ERS + 192}")
def rb_read(mt):
    lwait(("w", mt))
    for k in range(4):
        r = 16 + (mt & 1) * 16 + k * 4
        lds(("r", mt, k), f"ds_read_b128 v[{r}:{r+3}], v{V_ER} offset:{(mt*4+k)*4*ERS}")
def rb_store(mt, k):
    lwait(("r", mt, k))
    r = 16 + (mt & 1) * 16 + k * 4
    e(f"s_mov_b32 s{S_OOFF}, {(mt*4+k)*4*7168}")
    e(f"buffer_store_dwordx4 v[{r}:{r+3}], v{V_OUT}, s[{S_O}:{S_O+3}], s{S_OOFF} offen{stf}")
for mt in range(4):
    for t in range(7):
        e(mfma(t, mt, 1))
        if mt >= 2 and t == 0:
            rb_read(mt - 2)
        if mt >= 1 and 2 <= t <= 5:
            cvt_group(mt - 1, t - 2)
        if mt >= 2 and t >= 3:
            rb_store(mt - 2, t - 3)
rb_read(2)
e("s_nop 4")
for T in range(4):
    cvt_group(3, T)
    rb_store(2, T)
rb_read(3)
for k in range(4):
    rb_store(3, k)
stamp_flush()
if opts["dbg"]:
    e("s_mov_b64 exec, -1")
    e("s_load_dwordx2 s[56:57], s[0:1], 32")
    e("s_waitcnt vmcnt(0) lgkmcnt(0)")
    e("s_memtime s[68:69]")
    e("s_memrealtime s[70:71]")
    e("s_waitcnt lgkmcnt(0)")
    e("s_sub_u32 s68, s68, s72")
    e("s_sub_u32 s70, s70, s74")
    e("s_mov_b32 s60, s56")
    e("s_and_b32 s61, s57, 0xffff")
    e("s_mov_b32 s62, 256")
    e("s_mov_b32 s63, 0x00020000")
    e(f"s_cmp_lg_u32 s{S_WAVE}, 0")
    e("s_cbranch_scc1 L_dbgdone")
    e("s_and_b32 s58, s2, 31")
    e("s_cmp_lg_u32 s58, 0")
    e("s_cbranch_scc1 L_dbgdone")
    e("s_lshr_b32 s58, s2, 5")
    e("s_lshl_b32 s58, s58, 3")
    e("v_mov_b32 v2, s68")
    e("v_mov_b32 v3, s70")
    e("v_mov_b32 v1, 0")
    e("s_mov_b64 exec, 1")
    e("buffer_store_dwordx2 v[2:3], v1, s[60:63], s58 offen")
    lab("L_dbgdone")
e("s_endpgm")
lab("L_burst")
S_BPART = 71
for r in range(8 // opts["bparts"]):
    for hf in range(2):
        e(f"buffer_load_dwordx4 v[{V_PD}:{V_PD+3}], v{V_PQO}, s[{S_Q}:{S_Q+3}], s{S_BQ} offen offset:{hf*896}")
    e(f"s_add_u32 s{S_BQ}, s{S_BQ}, 14336")
    if r % 2 == 1:
        e(f"buffer_load_dwordx4 v[{V_PD}:{V_PD+3}], v{V_PXO}, s[{S_X}:{S_X+3}], s{S_BX} offen")
        e(f"s_add_u32 s{S_BX}, s{S_BX}, 16384")
if opts["bparts"] > 1:
    e(f"s_add_u32 s{S_BSTEP}, s{S_BSTEP}, {opts['bgap']}")
    e(f"s_add_u32 s71, s71, 1")
    e(f"s_cmp_ge_u32 s71, {opts['bparts']}")
    e(f"s_cselect_b32 s{S_BSTEP}, 99, s{S_BSTEP}")
e(f"s_setpc_b64 s[{S_RET}:{S_RET+1}]")

lab("L_producer")
V_STAMP[0] = 124
V_QOFF = 16
V_W = 32
V_LOFF = 34
V_LO0, V_LO1, V_HI0, V_HI1 = 36, 40, 44, 48
V_SEL = 52
V_PT = 60
V_OUTB = 76
V_T = 92
V_LH = 108
V_Q = 128

if opts["ps"]:
    e("s_setprio 3")
e("v_lshrrev_b32 v1, 5, v0")
e("v_and_b32 v2, 31, v0")
e("v_cmp_gt_u32 vcc, 28, v2")
e("v_bfrev_b32 v6, 1")
e(f"s_mul_i32 s{S_TMP}, s{S_PW}, 229376")
e(f"s_lshl_b32 s{S_TMP2}, s{S_N0}, 2")
e(f"s_add_u32 s{S_TMP}, s{S_TMP}, s{S_TMP2}")
e("v_mul_u32_u24 v3, 114688, v1")
e("v_lshl_add_u32 v3, v2, 4, v3")
e(f"v_add_u32 v3, s{S_TMP}, v3")
e(f"v_cndmask_b32 v{V_QOFF}, v6, v3, vcc")
for kk in range(1, 8):
    e(f"v_add_u32 v{V_QOFF+kk}, {kk*14336}, v{V_QOFF}")
e(f"s_lshl_b32 s{S_TMP2}, s{S_N0}, 1")
e("v_lshlrev_b32 v3, 3, v2")
e(f"v_add_u32 v3, s{S_TMP2}, v3")
if opts["lswap"]:
    e("v_mul_u32_u24 v4, 28672, v1")
    e("v_add_u32 v3, v3, v4")
e(f"v_cndmask_b32 v{V_LOFF}, v6, v3, vcc")
e(f"s_mov_b32 s{S_XOFF}, 256")
e(f"s_mov_b32 s{S_QOFF}, 0")
e("s_waitcnt lgkmcnt(0)")
srd(S_L, 8, LB)
srd(S_Q, 6, QB)
if opts["diag"]:
    e(f"v_mov_b32 v{V_STAMP[0]}, s{S_ST}")

vm = []
def q_items(stage):
    base = V_Q + (stage % PQ) * 32
    it = []
    for kk in range(8):
        ins = [f"buffer_load_dwordx4 v[{base+kk*4}:{base+kk*4+3}], v{V_QOFF+kk}, s[{S_Q}:{S_Q+3}], s{S_QOFF} offen"]
        if kk == 7:
            ins.append(f"s_add_u32 s{S_QOFF}, s{S_QOFF}, {64*14336}")
        it.append((("q", stage), ins, None))
    return it
def a_items(stage):
    slot = stage % NA
    it = []
    for i in range(8):
        pre = None
        if i % 4 == 0:
            pre = f"s_add_u32 m0, s{S_M0B}, {slot*A_SLOT + (i//4)*4096}"
        ins = [f"buffer_load_dwordx4 v{V_XOFF+i}, s[{S_X}:{S_X+3}], s{S_XOFF} offen offset:{(i&3)*1024} lds"]
        if i == 7:
            ins.append(f"s_add_u32 s{S_XOFF}, s{S_XOFF}, 128")
        it.append((("a", stage), ins, pre))
    return it
def emit_item(item):
    tag, ins, pre = item
    if pre is not None:
        e(pre)
        e("s_nop 0")
    for s in ins:
        e(s)
    vm.append(tag)
def younger(tag):
    idx = [i for i, t in enumerate(vm) if t == tag]
    if not idx:
        return None
    return len(vm) - 1 - max(idx)

for l in range(4 if opts["lswap"] else 8):
    e(f"s_mov_b32 s{S_TMP}, {l*7168}")
    e(f"buffer_load_dwordx2 v[{V_T+2*l}:{V_T+2*l+1}], v{V_LOFF}, s[{S_L}:{S_L+3}], s{S_TMP} offen")
    vm.append("L")
if not opts["ns"]:
    if opts["coop"]:
        e("s_barrier")
    for st_ in range(3):
        if opts["ps"] and st_ == opts["ps"]:
            e(f"s_setprio {opts['prio_p']}")
        for it in q_items(st_): emit_item(it)
srd(S_X, 4, XB)
e(f"s_lshl_b32 s{S_TMP}, s{S_PW}, 1")
e(f"v_add_u32 v3, s{S_TMP}, v1")
e("v_and_b32 v4, 7, v2")
e("v_lshlrev_b32 v5, 1, v2")
e("v_and_b32 v5, 7, v5")
e(f"v_cmp_gt_u32 s[{S_MASK}:{S_MASK+1}], 24, v2")
e("v_mov_b32 v7, 0x40000")
e("s_nop 0")
e(f"v_cndmask_b32 v4, v5, v4, s[{S_MASK}:{S_MASK+1}]")
e("v_xor_b32 v4, v3, v4")
e("v_lshlrev_b32 v4, 4, v4")
e("v_lshl_add_u32 v4, v2, 9, v4")
e(f"v_add_u32 v4, {B_BASE}, v4")
e(f"v_cndmask_b32 v{V_W}, v7, v4, vcc")
e(f"v_xor_b32 v4, 16, v{V_W}")
e(f"v_add_u32 v{V_W+1}, 256, v4")

if opts["pb"]:
    e(f"s_lshr_b32 s{S_TMP}, s2, 3")
    e(f"s_lshr_b32 s{S_BSTEP}, s{S_TMP}, 1")
    e(f"s_and_b32 s{S_TMP}, s{S_TMP}, 1")
    e(f"s_lshl_b32 s{S_BQ}, s{S_BSTEP}, 6")
    e(f"s_lshl_b32 s{S_TMP2}, s{S_TMP}, 5")
    e(f"s_add_u32 s{S_BQ}, s{S_BQ}, s{S_TMP2}")
    e(f"s_lshl_b32 s{S_TMP2}, s{S_PW}, 3")
    e(f"s_add_u32 s{S_BQ}, s{S_BQ}, s{S_TMP2}")
    e(f"s_mul_i32 s{S_BQ}, s{S_BQ}, 14336")
    e(f"s_and_b32 s{S_TMP2}, s2, 7")
    e(f"s_mul_i32 s{S_BX}, s{S_TMP2}, 1792")
    e(f"s_add_u32 s{S_BQ}, s{S_BQ}, s{S_BX}")
    e(f"s_lshl_b32 s{S_BX}, s{S_TMP2}, 1")
    e(f"s_add_u32 s{S_BX}, s{S_BX}, s{S_TMP}")
    e(f"s_lshl_b32 s{S_BX}, s{S_BX}, 2")
    e(f"s_add_u32 s{S_BX}, s{S_BX}, s{S_PW}")
    e(f"s_lshl_b32 s{S_BX}, s{S_BX}, 16")
    e(f"s_lshl_b32 s{S_TMP2}, s{S_BSTEP}, 7")
    e(f"s_add_u32 s{S_BX}, s{S_BX}, s{S_TMP2}")
    e("v_lshlrev_b32 v10, 4, v0")
    e("v_bfrev_b32 v11, 1")
    e("v_cmp_gt_u32 vcc, 56, v0")
    e("v_lshrrev_b32 v12, 3, v0")
    e("v_lshlrev_b32 v12, 11, v12")
    e(f"v_cndmask_b32 v8, v11, v10, vcc")
    e("v_and_b32 v11, 7, v0")
    e(f"v_lshl_add_u32 v9, v11, 4, v12")
    e(f"s_cmp_lt_u32 s{S_BSTEP}, {opts['bmin']}")
    e(f"s_cselect_b32 s{S_TMP}, 99, 0")
    e(f"s_sub_i32 s{S_BSTEP}, s{S_BSTEP}, {opts['bd']}")
    e(f"s_max_i32 s{S_BSTEP}, s{S_BSTEP}, 0")
    e(f"s_add_u32 s{S_BSTEP}, s{S_BSTEP}, s{S_TMP}")
    e(f"s_mov_b32 s{S_BCNT}, 0")
    e("s_mov_b32 s71, 0")
e(f"s_waitcnt vmcnt({younger('L')})")
stamp_now()
if opts["lswap"]:
    for k in range(8):
        e(f"v_mov_b32 v{V_T+8+k}, v{V_T+k}")
    e("s_nop 1")
    for k in range(8):
        e(f"v_permlane32_swap_b32 v{V_T+k}, v{V_T+8+k}")
    e("s_nop 1")
for d in range(2):
    for hb in range(2):
        t0, t1, t2, t3 = [V_T + 2 * (4 * hb + k) + d for k in range(4)]
        lo = (V_LO0, V_LO1)[hb]
        hi = (V_HI0, V_HI1)[hb]
        for cc in range(2):
            sc = (S_C0, S_C1)[cc]
            col = 2 * d + cc
            e(f"v_perm_b32 v{V_PT}, v{t1}, v{t0}, s{sc}")
            e(f"v_perm_b32 v{V_PT+1}, v{t3}, v{t2}, s{sc}")
            e(f"v_perm_b32 v{lo+col}, v{V_PT+1}, v{V_PT}, s{S_C2}")
            e(f"v_perm_b32 v{hi+col}, v{V_PT+1}, v{V_PT}, s{S_C3}")

if opts["ns"]:
    if opts["coop"]:
        e("s_barrier")
    for st_ in range(opts["ns"]):
        for it in q_items(st_): emit_item(it)
    if opts["ps"]:
        e(f"s_setprio {opts['prio_p']}")
AL = opts["alead"]
sched = {-1: [("q", k) for k in range(opts["ns"], 3)] if opts["ns"] else []}
for s in range(0, 15):
    g = []
    if s + 3 < NSTEP: g.append(("q", s + 3))
    sched[s] = g

def p_body(s):
    st = s + 1
    base = V_Q + (st % PQ) * 32
    Q = lambda kk, i: base + kk * 4 + i
    bo = (st % NB) * B_SLOT
    valu = []
    for hb in range(2):
        for i in range(4):
            valu.append(f"v_lshl_or_b32 v{V_PT+hb*8+i*2}, v{Q(4*hb+1,i)}, 8, v{Q(4*hb,i)}")
            valu.append(f"v_lshl_or_b32 v{V_PT+hb*8+i*2+1}, v{Q(4*hb+3,i)}, 8, v{Q(4*hb+2,i)}")
    for hb in range(2):
        for i in range(4):
            valu.append(f"v_lshl_or_b32 v{V_SEL+hb*4+i}, v{V_PT+hb*8+i*2+1}, 16, v{V_PT+hb*8+i*2}")
    for i in range(4):
        for hb in range(2):
            valu.append(f"v_perm_b32 v{V_LH+i*4+hb*2}, v{V_LO1+i}, v{V_LO0+i}, v{V_SEL+hb*4+i}")
            valu.append(f"v_perm_b32 v{V_LH+i*4+hb*2+1}, v{V_HI1+i}, v{V_HI0+i}, v{V_SEL+hb*4+i}")
    for i in range(4):
        for hb in range(2):
            valu.append(f"v_perm_b32 v{V_OUTB+i*4+hb*2}, v{V_LH+i*4+hb*2+1}, v{V_LH+i*4+hb*2}, s{S_C0}")
            valu.append(f"v_perm_b32 v{V_OUTB+i*4+hb*2+1}, v{V_LH+i*4+hb*2+1}, v{V_LH+i*4+hb*2}, s{S_C1}")
        valu.append(f"ds_write_b128 v{V_W+(i>>1)}, v[{V_OUTB+i*4}:{V_OUTB+i*4+3}] offset:{bo + (i&1)*128}")
    items = []
    for kind, stage in sched[s]:
        items += q_items(stage) if kind == "q" else a_items(stage)
    yq = younger(('q', st))
    if opts["pb"] and s >= 1:
        e("s_cmp_eq_u32 s71, 0")
        e(f"s_cbranch_scc1 L_pw{s}a")
        e(f"s_waitcnt vmcnt({yq + 20})")
        e("s_sub_u32 s71, s71, 1")
        e(f"s_branch L_pw{s}b")
        lab(f"L_pw{s}a")
        e(f"s_waitcnt vmcnt({yq})")
        lab(f"L_pw{s}b")
    else:
        e(f"s_waitcnt vmcnt({yq})")
    n = len(items)
    nv = len(valu)
    if s == -1 and not opts["ns"]:
        pos = [nv] * n
    else:
        pos = [(k * nv) // n for k in range(n)]
        if opts["qsp"]:
            pos = [k * (opts["qsp"] - 1) for k in range(n)]
    k = 0
    for vi in range(nv + 1):
        while k < n and pos[k] == vi:
            emit_item(items[k])
            k += 1
        if vi < nv:
            e(valu[vi])
    if opts["pb"] and 0 <= s <= 12:
        e(f"s_cmp_lg_u32 s{S_BCNT}, s{S_BSTEP}")
        e(f"s_cbranch_scc1 L_pbs{s}")
        e(f"s_getpc_b64 s[{S_RET}:{S_RET+1}]")
        e(f"s_add_u32 s{S_RET}, s{S_RET}, 12")
        e(f"s_addc_u32 s{S_RET+1}, s{S_RET+1}, 0")
        e("s_branch L_pburst")
        lab(f"L_pbs{s}")
        e(f"s_add_u32 s{S_BCNT}, s{S_BCNT}, 1")
    y = younger(("a", st))
    if y is None:
        e("s_waitcnt lgkmcnt(0)")
    else:
        e(f"s_waitcnt vmcnt({y}) lgkmcnt(0)")
    stamp_commit()
    e("s_barrier")
    stamp()

bodies = {}
for s in range(-1, 15):
    start = len(out)
    p_body(s)
    bodies[s] = out[start:]
    del out[start:]
for s in range(1, 5):
  for rep in (4, 8):
    a, b = bodies[s], bodies[s + rep]
    assert len(a) == len(b)
    for i in range(len(a)):
        if re.sub(r"L_p(w|bs)\d+", "L", a[i]) == re.sub(r"L_p(w|bs)\d+", "L", b[i]): continue
        if a[i] != b[i]:
            ma = re.match(r"(\s*s_waitcnt vmcnt\()(\d+)(\).*)", a[i])
            mb = re.match(r"(\s*s_waitcnt vmcnt\()(\d+)(\).*)", b[i])
            assert ma and mb and ma.group(3) == mb.group(3), (a[i], b[i])
            a[i] = ma.group(1) + str(min(int(ma.group(2)), int(mb.group(2)))) + ma.group(3)
stamp()
for s in range(-1, 1):
    out.extend(bodies[s])
e(f"s_mov_b32 s{S_LOOP}, 0")
lab("L_ploop")
for s in range(1, 5):
    out.extend(bodies[s])
e(f"s_add_u32 s{S_LOOP}, s{S_LOOP}, 1")
e(f"s_cmp_lt_u32 s{S_LOOP}, 3")
e("s_cbranch_scc1 L_ploop")
for s in range(13, 15):
    out.extend(bodies[s])
if opts["diag"]:
    e("s_waitcnt lgkmcnt(0)")
    stamp_commit()
    stamp_flush()
if opts["pb"]:
    e("s_endpgm")
    lab("L_pburst")
    for r in range(8):
        for hf in range(2):
            e(f"buffer_load_dwordx4 v[12:15], v8, s[{S_Q}:{S_Q+3}], s{S_BQ} offen offset:{hf*896}")
        e(f"s_add_u32 s{S_BQ}, s{S_BQ}, 14336")
        if r % 2 == 1:
            e(f"buffer_load_dwordx4 v[12:15], v9, s[{S_X}:{S_X+3}], s{S_BX} offen")
            e(f"s_add_u32 s{S_BX}, s{S_BX}, 16384")
    e("s_mov_b32 s71, 2")
    e(f"s_setpc_b64 s[{S_RET}:{S_RET+1}]")
lab("L_end")
e("s_endpgm")
lab("L_codeend")

out.append(f""".section .rodata,"a"
.p2align 6
.amdhsa_kernel {NAME}_kernel
  .amdhsa_next_free_vgpr 256
  .amdhsa_next_free_sgpr 80
  .amdhsa_accum_offset 256
  .amdhsa_group_segment_fixed_size 0
  .amdhsa_kernarg_size 48
  .amdhsa_user_sgpr_count 2
  .amdhsa_user_sgpr_kernarg_segment_ptr 1
  .amdhsa_system_sgpr_workgroup_id_x 1
.end_amdhsa_kernel""")

open(sys.argv[1], "w").write("\n".join(out) + "\n")
```

```python
import sys, re

NAME = "standalone__weight_only_int_squeezellm__prompt"
NA = 4
NB = 2
PQ = 4
NSTEP = 16
A_SLOT = 32768
B_BASE = NA * A_SLOT
B_SLOT = 14336
LDS = B_BASE + NB * B_SLOT

opts = dict(prio_c=0, prio_p=0, diag=0, dbg=0, stflag=1, bd=5, cpf=4, alead=2, lswap=1, ord=0, bmin=4, ps=2, dpos=12, dgap=4, fe=1, coop=4, cpe=0, bparts=1, bgap=1, pb=0, alead3=0, qsp=0, bcp=11, w0=12, ns=1, swap=0, nopre=1, hs=0)
for a in sys.argv[2:]:
    k, v = a.split("=")
    opts[k] = int(v)

out = []
def e(s):
    out.append("    " + s)
def lab(s):
    out.append(s + ":")

S_X, S_Q, S_L, S_O = 12, 16, 20, 24
S_MT, S_NT, S_M0, S_N0 = 28, 29, 30, 31
S_C0, S_C1, S_C2, S_C3 = 32, 33, 34, 35
S_WAVE = 36
S_PW = 37
S_MASK = 38
S_QOFF = 40
S_XOFF = 41
S_TMP = 42
S_TMP2 = 43
S_OOFF = 44
S_BSTEP, S_BCNT, S_BQ = 45, 46, 47
S_LOOP = 48
S_M0B = 49
S_RET = 50
S_ST = 52
S_SI = 54
S_BX = 55
S_PC = 64
V_STAMP = [250]
def stamp():
    if not opts["diag"]: return
    e(f"s_memrealtime s[{S_ST}:{S_ST+1}]" if opts["diag"] == 2 else f"s_memtime s[{S_ST}:{S_ST+1}]")
def stamp_commit():
    if not opts["diag"]: return
    e(f"v_cmp_eq_u32 vcc, s{S_SI}, v0")
    e(f"v_mov_b32 v{V_STAMP[0]+1}, s{S_ST}")
    e("s_nop 0")
    e(f"v_cndmask_b32 v{V_STAMP[0]}, v{V_STAMP[0]}, v{V_STAMP[0]+1}, vcc")
    e(f"s_add_u32 s{S_SI}, s{S_SI}, 1")
def stamp_now():
    if not opts["diag"]: return
    stamp()
    e("s_waitcnt lgkmcnt(0)")
    stamp_commit()
def stamp_flush():
    if not opts["diag"]: return
    e("s_mov_b64 exec, -1")
    e("s_load_dwordx2 s[56:57], s[0:1], 40")
    e("s_waitcnt vmcnt(0) lgkmcnt(0)")
    stamp_now()
    e("s_mov_b32 s60, s56")
    e("s_and_b32 s61, s57, 0xffff")
    e("s_mov_b32 s62, 0x100000")
    e("s_mov_b32 s63, 0x00020000")
    e(f"s_lshl_b32 s58, s2, 3")
    e(f"s_add_u32 s58, s58, s{S_WAVE}")
    e("s_lshl_b32 s58, s58, 8")
    e("v_lshlrev_b32 v1, 2, v0")
    e(f"buffer_store_dword v{V_STAMP[0]}, v1, s[60:63], s58 offen")

def srd(d, lo, nbytes):
    e(f"s_mov_b32 s{d}, s{lo}")
    e(f"s_and_b32 s{d+1}, s{lo+1}, 0xffff")
    e(f"s_mov_b32 s{d+2}, {nbytes}")
    e(f"s_mov_b32 s{d+3}, 0x00020000")

XB, QB, LB, OB = 2048 * 1024 * 2, 1024 * 3584 * 4, 8 * 3584 * 2, 2048 * 3584 * 2

out.append(f"""; fused SqueezeLLM LUT dequant + bf16 MFMA GEMM, 256x112 tile per workgroup, 4 consumer + 4 producer waves
; @launch grid=(256,1,1) block=(512,1,1) lds={LDS}
.amdgcn_target "amdgcn-amd-amdhsa--gfx950"
.text
.globl {NAME}_kernel
.p2align 8
.type {NAME}_kernel,@function
{NAME}_kernel:""")

e("s_cmp_ge_u32 s2, 256")
e("s_cbranch_scc1 L_end")
e("s_load_dwordx8 s[4:11], s[0:1], 0")
if opts["cpe"]:
    e(f"s_getpc_b64 s[{S_PC}:{S_PC+1}]")
    lab("L_pc0")
    e("v_lshlrev_b32 v2, 4, v0")
    e(f"s_sub_u32 s{S_PC}, s{S_PC}, L_pc0-{NAME}_kernel")
    e(f"s_subb_u32 s{S_PC+1}, s{S_PC+1}, 0")
    e(f"global_load_dwordx4 v[244:247], v2, s[{S_PC}:{S_PC+1}]")
    e("v_add_u32 v2, 0x2000, v2")
    e(f"v_min_u32 v3, L_codeend-{NAME}_kernel-16, v2")
    e(f"global_load_dwordx4 v[244:247], v3, s[{S_PC}:{S_PC+1}]")
if opts["dbg"]:
    e("s_memtime s[72:73]")
    e("s_memrealtime s[74:75]")
if opts["diag"]:
    e(f"s_mov_b32 s{S_SI}, 1")
    stamp()
e(f"s_and_b32 s{S_MT}, s2, 7")
e(f"s_lshr_b32 s{S_NT}, s2, 3")
e(f"s_and_b32 s{S_NT}, s{S_NT}, 3")
e(f"s_lshl_b32 s{S_MT}, s{S_MT}, 2")
e(f"s_add_u32 s{S_NT}, s{S_NT}, s{S_MT}")
e(f"s_lshr_b32 s{S_MT}, s2, 5")
e(f"s_lshl_b32 s{S_M0}, s{S_MT}, 8")
e(f"s_mul_i32 s{S_N0}, s{S_NT}, 112")
e("v_lshrrev_b32 v1, 6, v0")
e("v_and_b32 v0, 63, v0")
e(f"s_mov_b32 s{S_C0}, 0x05010400")
e(f"v_readfirstlane_b32 s{S_WAVE}, v1")
e(f"s_mov_b32 s{S_C1}, 0x07030602")
e(f"s_mov_b32 s{S_C2}, 0x05040100")
e(f"s_mov_b32 s{S_C3}, 0x07060302")
if opts["swap"]:
    e(f"s_xor_b32 s{S_WAVE}, s{S_WAVE}, 4")
e(f"s_and_b32 s{S_PW}, s{S_WAVE}, 3")
V_XOFF = 24
e("v_lshrrev_b32 v3, 3, v0")
e("v_and_b32 v4, 7, v0")
e("v_lshrrev_b32 v5, 4, v0")
e("v_xor_b32 v4, v4, v5")
e("v_lshlrev_b32 v4, 4, v4")
e("v_lshl_add_u32 v3, v3, 11, v4")
e(f"s_lshl_b32 s{S_TMP}, s{S_PW}, 6")
e(f"s_add_u32 s{S_TMP}, s{S_TMP}, s{S_M0}")
e(f"s_lshl_b32 s{S_TMP}, s{S_TMP}, 11")
e(f"v_add_u32 v3, s{S_TMP}, v3")
e("v_xor_b32 v4, 64, v3")
for i in range(8):
    src = 4 if (i & 1) else 3
    e(f"v_add_u32 v{V_XOFF+i}, {i*16384 - (i&3)*1024}, v{src}")
e(f"s_lshl_b32 s{S_M0B}, s{S_PW}, 13")
e(f"s_cmp_ge_u32 s{S_WAVE}, 4")
e("s_cbranch_scc1 L_producer")

V_A = 2
V_B = 6
V_B6 = 10
V_OUT = 12
V_EW = 13
V_EW6 = 14
V_ER = 15
X = [32, 76]
W = [48, 92]
ACC = 128
CVT = 32
ERS = 240
V_PQO, V_PXO, V_PD = 240, 241, 244
def acc(t, mt):
    return ACC + (t * 4 + mt) * 4

if opts["cpf"] and not opts["cpe"]:
    e(f"s_getpc_b64 s[{S_PC}:{S_PC+1}]")
    lab("L_pc")
    e(f"s_sub_u32 s{S_PC}, s{S_PC}, L_pc-{NAME}_kernel")
    e(f"s_subb_u32 s{S_PC+1}, s{S_PC+1}, 0")
    e(f"s_lshl_b32 s{S_TMP}, s{S_WAVE}, 10")
    e("v_lshlrev_b32 v2, 4, v0")
    e(f"v_add_u32 v2, s{S_TMP}, v2")
    for k in range(opts["cpf"]):
        e(f"v_min_u32 v3, L_codeend-{NAME}_kernel-16, v2")
        e(f"global_load_dwordx4 v[{V_PD}:{V_PD+3}], v3, s[{S_PC}:{S_PC+1}]")
        e("v_add_u32 v2, 0x1000, v2")
if opts["prio_c"]:
    e(f"s_setprio {opts['prio_c']}")
e("s_waitcnt lgkmcnt(0)")
srd(S_X, 4, XB)
if opts["diag"]:
    e(f"v_mov_b32 v{V_STAMP[0]}, s{S_ST}")
if opts["coop"]:
    srd(S_Q, 6, QB)
    e(f"s_lshr_b32 s{S_TMP}, s2, 3")
    e(f"s_lshl_b32 s{S_TMP}, s{S_TMP}, 1")
    e(f"s_lshr_b32 s{S_TMP2}, s{S_WAVE}, 1")
    e(f"s_add_u32 s{S_TMP}, s{S_TMP}, s{S_TMP2}")
    e(f"s_mul_i32 s{S_TMP}, s{S_TMP}, 14336")
    e(f"s_and_b32 s{S_TMP2}, s2, 7")
    e(f"s_mul_i32 s{S_TMP2}, s{S_TMP2}, 1792")
    e(f"s_add_u32 s{S_TMP}, s{S_TMP}, s{S_TMP2}")
    e(f"s_and_b32 s{S_TMP2}, s{S_WAVE}, 1")
    e(f"s_mul_i32 s{S_TMP2}, s{S_TMP2}, 896")
    e(f"s_add_u32 s{S_BQ}, s{S_TMP}, s{S_TMP2}")
    e("v_lshlrev_b32 v1, 4, v0")
    e("v_bfrev_b32 v2, 1")
    e("v_cmp_gt_u32 vcc, 56, v0")
    e("v_lshrrev_b32 v3, 3, v0")
    e("v_lshlrev_b32 v3, 11, v3")
    e(f"v_cndmask_b32 v{V_PQO}, v2, v1, vcc")
    e("v_and_b32 v2, 7, v0")
    e(f"v_lshl_add_u32 v{V_PXO}, v2, 4, v3")
    e(f"s_lshl_b32 s{S_BX}, s2, 14")
    e(f"s_lshl_b32 s{S_TMP}, s{S_WAVE}, 7")
    e(f"s_add_u32 s{S_BX}, s{S_BX}, s{S_TMP}")
    for st_ in range(opts["coop"]):
        e(f"buffer_load_dwordx4 v[{V_PD}:{V_PD+3}], v{V_PQO}, s[{S_Q}:{S_Q+3}], s{S_BQ} offen")
        e(f"s_add_u32 s{S_BQ}, s{S_BQ}, {64*14336}")
        if st_ % 4 == 0:
            if st_ + 4 > opts["coop"]:
                e(f"s_cmp_ge_u32 s{S_WAVE}, {opts['coop'] - st_}")
                e(f"s_cbranch_scc1 L_cx{st_}")
            e(f"buffer_load_dwordx4 v[{V_PD}:{V_PD+3}], v{V_PXO}, s[{S_X}:{S_X+3}], s{S_BX} offen offset:{st_*128}")
            lab(f"L_cx{st_}")
    if not opts["nopre"]:
        e("s_waitcnt vmcnt(0)")
        e("s_barrier")
for stg in range(2):
    e(f"s_mov_b32 s{S_XOFF}, {stg*128}")
    for i in range(8):
        if i % 4 == 0:
            e(f"s_add_u32 m0, s{S_M0B}, {stg*A_SLOT + (i//4)*4096}")
            e("s_nop 0")
        e(f"buffer_load_dwordx4 v{V_XOFF+i}, s[{S_X}:{S_X+3}], s{S_XOFF} offen offset:{(i&3)*1024} lds")
e(f"s_mov_b32 s{S_XOFF}, 256")
e(f"s_add_u32 m0, s{S_M0B}, {2*A_SLOT}")
e("s_nop 0")
for i in range(4):
    e(f"buffer_load_dwordx4 v{V_XOFF+i}, s[{S_X}:{S_X+3}], s{S_XOFF} offen offset:{(i&3)*1024} lds")
if opts["hs"]:
    e(f"s_mov_b32 s{S_XOFF}, 384")
srd(S_Q, 6, QB)
srd(S_O, 10, OB)
e(f"s_lshr_b32 s{S_TMP}, s2, 3")
e(f"s_lshr_b32 s{S_BSTEP}, s{S_TMP}, 1")
e(f"s_and_b32 s{S_TMP}, s{S_TMP}, 1")
e(f"s_lshl_b32 s{S_BQ}, s{S_BSTEP}, 6")
e(f"s_lshl_b32 s{S_TMP2}, s{S_TMP}, 5")
e(f"s_add_u32 s{S_BQ}, s{S_BQ}, s{S_TMP2}")
e(f"s_lshl_b32 s{S_TMP2}, s{S_WAVE}, 3")
e(f"s_add_u32 s{S_BQ}, s{S_BQ}, s{S_TMP2}")
e(f"s_mul_i32 s{S_BQ}, s{S_BQ}, 14336")
e(f"s_and_b32 s{S_TMP2}, s2, 7")
e(f"s_mul_i32 s{S_BX}, s{S_TMP2}, 1792")
e(f"s_add_u32 s{S_BQ}, s{S_BQ}, s{S_BX}")
e(f"s_lshl_b32 s{S_BX}, s{S_TMP2}, 1")
e(f"s_add_u32 s{S_BX}, s{S_BX}, s{S_TMP}")
e(f"s_lshl_b32 s{S_BX}, s{S_BX}, 2")
e(f"s_add_u32 s{S_BX}, s{S_BX}, s{S_WAVE}")
e(f"s_lshl_b32 s{S_BX}, s{S_BX}, 16")
e(f"s_lshl_b32 s{S_TMP2}, s{S_BSTEP}, 7")
e(f"s_add_u32 s{S_BX}, s{S_BX}, s{S_TMP2}")
e("v_lshlrev_b32 v1, 4, v0")
e("v_bfrev_b32 v2, 1")
e("v_cmp_gt_u32 vcc, 56, v0")
e("v_lshrrev_b32 v3, 3, v0")
e("v_lshlrev_b32 v3, 11, v3")
e(f"v_cndmask_b32 v{V_PQO}, v2, v1, vcc")
e("v_and_b32 v2, 7, v0")
e(f"v_lshl_add_u32 v{V_PXO}, v2, 4, v3")
e(f"s_cmp_lt_u32 s{S_BSTEP}, {opts['bmin']}")
e(f"s_cselect_b32 s{S_TMP}, 99, 0")
e(f"s_sub_i32 s{S_BSTEP}, s{S_BSTEP}, {opts['bd']}")
e(f"s_max_i32 s{S_BSTEP}, s{S_BSTEP}, 0")
e(f"s_add_u32 s{S_BSTEP}, s{S_BSTEP}, s{S_TMP}")
e(f"s_mov_b32 s{S_BCNT}, 0")
e("s_mov_b32 s71, 0")
e(f"s_mov_b32 s72, s{S_BSTEP}")
NBURST = 20 // opts["bparts"]
bcount = 0
def burst_check():
    global bcount
    if opts["pb"]: return
    bcount += 1
    e(f"s_cmp_lg_u32 s{S_BCNT}, s{S_BSTEP}")
    e(f"s_cbranch_scc1 L_bskip{bcount}")
    e(f"s_getpc_b64 s[{S_RET}:{S_RET+1}]")
    e(f"s_add_u32 s{S_RET}, s{S_RET}, 12")
    e(f"s_addc_u32 s{S_RET+1}, s{S_RET+1}, 0")
    e("s_branch L_burst")
    lab(f"L_bskip{bcount}")
    e(f"s_add_u32 s{S_BCNT}, s{S_BCNT}, 1")
burst_check()
e("v_and_b32 v110, 15, v0")
e("v_lshrrev_b32 v111, 4, v0")
e(f"s_lshl_b32 s{S_TMP}, s{S_WAVE}, 13")
e("v_lshrrev_b32 v1, 1, v110")
e("v_xor_b32 v1, v111, v1")
e("v_lshlrev_b32 v1, 4, v1")
e("v_lshl_add_u32 v104, v110, 7, v1")
e(f"v_add_u32 v{V_A}, s{S_TMP}, v104")
e(f"v_add_u32 v{V_A+1}, 0x10000, v{V_A}")
e(f"v_xor_b32 v{V_A+2}, 64, v{V_A}")
e(f"v_xor_b32 v{V_A+3}, 64, v{V_A+1}")
e(f"v_add_u32 v{V_B6}, {B_BASE + 96*128}, v104")
e(f"v_xor_b32 v{V_B6+1}, 64, v{V_B6}")
e("v_lshrrev_b32 v1, 2, v110")
e("v_and_b32 v105, 3, v110")
e("v_lshl_add_u32 v105, v1, 3, v105")
e("v_lshlrev_b32 v105, 7, v105")
e("v_lshlrev_b32 v1, 1, v1")
e("v_xor_b32 v1, v111, v1")
e("v_bfe_u32 v106, v110, 1, 1")
e("v_xor_b32 v1, v1, v106")
e("v_lshl_add_u32 v105, v1, 4, v105")
e(f"v_add_u32 v{V_B}, {B_BASE}, v105")
e(f"v_xor_b32 v1, 16, v{V_B}")
e(f"v_add_u32 v{V_B+1}, 512, v1")
e(f"v_xor_b32 v{V_B+2}, 64, v{V_B}")
e(f"v_xor_b32 v{V_B+3}, 64, v{V_B+1}")
e(f"s_lshl_b32 s{S_TMP}, s{S_WAVE}, 14")
e(f"v_mul_u32_u24 v1, {ERS}, v110")
e(f"v_add_u32 v1, s{S_TMP}, v1")
e(f"v_lshl_add_u32 v{V_EW}, v111, 4, v1")
e(f"v_lshl_add_u32 v{V_EW6}, v111, 3, v1")
e("v_mul_u32_u24 v1, 4682, v0")
e("v_lshrrev_b32 v1, 16, v1")
e("v_mul_u32_u24 v105, 14, v1")
e("v_sub_u32 v105, v0, v105")
e(f"v_mul_u32_u24 v106, {ERS}, v1")
e("v_lshl_add_u32 v106, v105, 4, v106")
e(f"v_add_u32 v{V_ER}, s{S_TMP}, v106")
e(f"s_lshl_b32 s{S_TMP}, s{S_WAVE}, 6")
e(f"s_add_u32 s{S_TMP}, s{S_TMP}, s{S_M0}")
e(f"v_add_u32 v1, s{S_TMP}, v1")
e("v_mul_u32_u24 v1, 7168, v1")
e(f"s_lshl_b32 s{S_TMP2}, s{S_N0}, 1")
e(f"v_add_u32 v1, s{S_TMP2}, v1")
e(f"v_lshl_add_u32 v{V_OUT}, v105, 4, v1")
e("v_cmp_gt_u32 vcc, 56, v0")
e("v_bfrev_b32 v1, 1")
e("s_nop 0")
e(f"v_cndmask_b32 v{V_OUT}, v1, v{V_OUT}, vcc")
e(f"v_cndmask_b32 v{V_ER}, v{V_EW}, v{V_ER}, vcc")
for r in range(112):
    e(f"v_mov_b32 v{ACC+r}, 0")
if opts["pb"]:
    e("s_mov_b32 s72, 1")
e(f"s_cmp_eq_u32 s72, 0")
e("s_cbranch_scc1 L_cw1")
e(f"s_waitcnt vmcnt({opts['w0']})")
e("s_branch L_cw2")
lab("L_cw1")
e(f"s_waitcnt vmcnt({NBURST+opts['w0']})")
lab("L_cw2")

def c_reads(slotA, slotB, kh, st):
    r = []
    va = V_A + kh * 2 + (slotA >> 1)
    ao = (slotA & 1) * 32768
    bo = slotB * B_SLOT
    def xr(mt):
        return f"ds_read_b128 v[{X[st]+mt*4}:{X[st]+mt*4+3}], v{va} offset:{ao + mt*2048}"
    def wr(t):
        if t < 6:
            return f"ds_read_b128 v[{W[st]+t*4}:{W[st]+t*4+3}], v{V_B + kh*2 + (t&1)} offset:{bo + (t>>1)*4096}"
        return f"ds_read_b128 v[{W[st]+t*4}:{W[st]+t*4+3}], v{V_B6 + kh} offset:{bo}"
    r.append(wr(0))
    for mt in range(4):
        r.append(xr(mt))
    for t in range(1, 7):
        r.append(wr(t))
    return r

def mfma(t, mt, st):
    a = acc(t, mt)
    return f"v_mfma_f32_16x16x32_bf16 v[{a}:{a+3}], v[{W[st]+t*4}:{W[st]+t*4+3}], v[{X[st]+mt*4}:{X[st]+mt*4+3}], v[{a}:{a+3}]"

def c_phase(st, reads, dma, commit=False, endwait=None, bc=False):
    idx = 0
    dpos = [opts["dpos"] + k * opts["dgap"] for k in range(4)]
    for t in range(7):
        for mt in range(4):
            e(mfma(t, mt, st))
            if idx < len(reads):
                e(reads[idx])
            if bc and idx == opts["bcp"] - 1:
                burst_check()
            if dma is not None:
                slot, half = dma
                if idx == dpos[0] - 1:
                    e(f"s_add_u32 m0, s{S_M0B}, {slot*A_SLOT + half*4096}")
                if idx in dpos:
                    k = dpos.index(idx)
                    i = half * 4 + k
                    e(f"buffer_load_dwordx4 v{V_XOFF+i}, s[{S_X}:{S_X+3}], s{S_XOFF} offen offset:{k*1024} lds")
                    if k == 3 and (half == 1 or opts["hs"]):
                        e(f"s_add_u32 s{S_XOFF}, s{S_XOFF}, 128")
            idx += 1
    if endwait is not None:
        e(f"s_waitcnt vmcnt({endwait}) lgkmcnt(0)")
    else:
        e("s_waitcnt lgkmcnt(0)")
    if commit:
        stamp_commit()

assert 15 - opts["bd"] + (opts["bparts"] - 1) * opts["bgap"] <= 12
e("s_barrier")
stamp()
for r in c_reads(0, 0, 0, 0):
    e(r)
e(f"s_mov_b32 s{S_LOOP}, 0")
e("s_waitcnt lgkmcnt(0)")
stamp_commit()
lab("L_cloop")
for u in range(4):
    c_phase(0, c_reads(u % NA, u % NB, 1, 1), None if opts["hs"] else ((u + 2) % NA, 1), endwait=4 if opts["hs"] else 8)
    e("s_barrier")
    stamp()
    if opts["bcp"] == 0:
        burst_check()
    c_phase(1, c_reads((u + 1) % NA, (u + 1) % NB, 0, 0), ((u + 3) % NA, 0), True, bc=opts["bcp"] > 0)
e(f"s_add_u32 s{S_LOOP}, s{S_LOOP}, 1")
e(f"s_cmp_lt_u32 s{S_LOOP}, 3")
e("s_cbranch_scc1 L_cloop")
for s in range(12, 16):
    u = s % 4
    c_phase(0, c_reads(u % NA, u % NB, 1, 1), ((u + 2) % NA, 1) if (s + 2 < 16 and not opts["hs"]) else None,
            endwait=((4 if opts["hs"] else 8) if s <= 13 else (0 if s == 14 else None)))
    if s < 15:
        e("s_barrier")
        stamp()
        c_phase(1, c_reads((u + 1) % NA, (u + 1) % NB, 0, 0), ((u + 3) % NA, 0) if s + 3 < 16 else None, True)
stamp_now()
stf = ["", " nt", " sc1", " sc0 sc1"][opts["stflag"]]
lq = []
def lds(tag, ins):
    e(ins); lq.append(tag)
def lwait(tag):
    n = len(lq) - 1 - max(i for i, t in enumerate(lq) if t == tag)
    assert n <= 15
    e(f"s_waitcnt lgkmcnt({n})")
CV = 48
cvi = [0]
def cvt_group(mt, T):
    c = CV + (cvi[0] % 6) * 4
    cvi[0] += 1
    if T < 3:
        a, b = acc(2 * T, mt), acc(2 * T + 1, mt)
        e(f"v_cvt_pk_bf16_f32 v{c}, v{a}, v{a+1}")
        e(f"v_cvt_pk_bf16_f32 v{c+1}, v{a+2}, v{a+3}")
        e(f"v_cvt_pk_bf16_f32 v{c+2}, v{b}, v{b+1}")
        e(f"v_cvt_pk_bf16_f32 v{c+3}, v{b+2}, v{b+3}")
        lds(("w", mt), f"ds_write_b128 v{V_EW}, v[{c}:{c+3}] offset:{mt*16*ERS + T*64}")
    else:
        a = acc(6, mt)
        e(f"v_cvt_pk_bf16_f32 v{c}, v{a}, v{a+1}")
        e(f"v_cvt_pk_bf16_f32 v{c+1}, v{a+2}, v{a+3}")
        lds(("w", mt), f"ds_write_b64 v{V_EW6}, v[{c}:{c+1}] offset:{mt*16*ERS + 192}")
def rb_read(mt):
    lwait(("w", mt))
    for k in range(4):
        r = 16 + (mt & 1) * 16 + k * 4
        lds(("r", mt, k), f"ds_read_b128 v[{r}:{r+3}], v{V_ER} offset:{(mt*4+k)*4*ERS}")
def rb_store(mt, k):
    lwait(("r", mt, k))
    r = 16 + (mt & 1) * 16 + k * 4
    e(f"s_mov_b32 s{S_OOFF}, {(mt*4+k)*4*7168}")
    e(f"buffer_store_dwordx4 v[{r}:{r+3}], v{V_OUT}, s[{S_O}:{S_O+3}], s{S_OOFF} offen{stf}")
for mt in range(4):
    for t in range(7):
        e(mfma(t, mt, 1))
        if mt >= 2 and t == 0:
            rb_read(mt - 2)
        if mt >= 1 and 2 <= t <= 5:
            cvt_group(mt - 1, t - 2)
        if mt >= 2 and t >= 3:
            rb_store(mt - 2, t - 3)
rb_read(2)
e("s_nop 4")
for T in range(4):
    cvt_group(3, T)
    rb_store(2, T)
rb_read(3)
for k in range(4):
    rb_store(3, k)
stamp_flush()
if opts["dbg"]:
    e("s_mov_b64 exec, -1")
    e("s_load_dwordx2 s[56:57], s[0:1], 32")
    e("s_waitcnt vmcnt(0) lgkmcnt(0)")
    e("s_memtime s[68:69]")
    e("s_memrealtime s[70:71]")
    e("s_waitcnt lgkmcnt(0)")
    e("s_sub_u32 s68, s68, s72")
    e("s_sub_u32 s70, s70, s74")
    e("s_mov_b32 s60, s56")
    e("s_and_b32 s61, s57, 0xffff")
    e("s_mov_b32 s62, 256")
    e("s_mov_b32 s63, 0x00020000")
    e(f"s_cmp_lg_u32 s{S_WAVE}, 0")
    e("s_cbranch_scc1 L_dbgdone")
    e("s_and_b32 s58, s2, 31")
    e("s_cmp_lg_u32 s58, 0")
    e("s_cbranch_scc1 L_dbgdone")
    e("s_lshr_b32 s58, s2, 5")
    e("s_lshl_b32 s58, s58, 3")
    e("v_mov_b32 v2, s68")
    e("v_mov_b32 v3, s70")
    e("v_mov_b32 v1, 0")
    e("s_mov_b64 exec, 1")
    e("buffer_store_dwordx2 v[2:3], v1, s[60:63], s58 offen")
    lab("L_dbgdone")
e("s_endpgm")
lab("L_burst")
S_BPART = 71
for r in range(8 // opts["bparts"]):
    for hf in range(2):
        e(f"buffer_load_dwordx4 v[{V_PD}:{V_PD+3}], v{V_PQO}, s[{S_Q}:{S_Q+3}], s{S_BQ} offen offset:{hf*896}")
    e(f"s_add_u32 s{S_BQ}, s{S_BQ}, 14336")
    if r % 2 == 1:
        e(f"buffer_load_dwordx4 v[{V_PD}:{V_PD+3}], v{V_PXO}, s[{S_X}:{S_X+3}], s{S_BX} offen")
        e(f"s_add_u32 s{S_BX}, s{S_BX}, 16384")
if opts["bparts"] > 1:
    e(f"s_add_u32 s{S_BSTEP}, s{S_BSTEP}, {opts['bgap']}")
    e(f"s_add_u32 s71, s71, 1")
    e(f"s_cmp_ge_u32 s71, {opts['bparts']}")
    e(f"s_cselect_b32 s{S_BSTEP}, 99, s{S_BSTEP}")
e(f"s_setpc_b64 s[{S_RET}:{S_RET+1}]")

lab("L_producer")
V_STAMP[0] = 124
V_QOFF = 16
V_W = 32
V_LOFF = 34
V_LO0, V_LO1, V_HI0, V_HI1 = 36, 40, 44, 48
V_SEL = 52
V_PT = 60
V_OUTB = 76
V_T = 92
V_LH = 108
V_Q = 128

if opts["ps"]:
    e("s_setprio 3")
e("v_lshrrev_b32 v1, 5, v0")
e("v_and_b32 v2, 31, v0")
e("v_cmp_gt_u32 vcc, 28, v2")
e("v_bfrev_b32 v6, 1")
e(f"s_mul_i32 s{S_TMP}, s{S_PW}, 229376")
e(f"s_lshl_b32 s{S_TMP2}, s{S_N0}, 2")
e(f"s_add_u32 s{S_TMP}, s{S_TMP}, s{S_TMP2}")
e("v_mul_u32_u24 v3, 114688, v1")
e("v_lshl_add_u32 v3, v2, 4, v3")
e(f"v_add_u32 v3, s{S_TMP}, v3")
e(f"v_cndmask_b32 v{V_QOFF}, v6, v3, vcc")
for kk in range(1, 8):
    e(f"v_add_u32 v{V_QOFF+kk}, {kk*14336}, v{V_QOFF}")
e(f"s_lshl_b32 s{S_TMP2}, s{S_N0}, 1")
e("v_lshlrev_b32 v3, 3, v2")
e(f"v_add_u32 v3, s{S_TMP2}, v3")
if opts["lswap"]:
    e("v_mul_u32_u24 v4, 28672, v1")
    e("v_add_u32 v3, v3, v4")
e(f"v_cndmask_b32 v{V_LOFF}, v6, v3, vcc")
e(f"s_mov_b32 s{S_XOFF}, 256")
e(f"s_mov_b32 s{S_QOFF}, 0")
e("s_waitcnt lgkmcnt(0)")
srd(S_L, 8, LB)
srd(S_Q, 6, QB)
if opts["diag"]:
    e(f"v_mov_b32 v{V_STAMP[0]}, s{S_ST}")

vm = []
def q_items(stage):
    base = V_Q + (stage % PQ) * 32
    it = []
    for kk in range(8):
        ins = [f"buffer_load_dwordx4 v[{base+kk*4}:{base+kk*4+3}], v{V_QOFF+kk}, s[{S_Q}:{S_Q+3}], s{S_QOFF} offen"]
        if kk == 7:
            ins.append(f"s_add_u32 s{S_QOFF}, s{S_QOFF}, {64*14336}")
        it.append((("q", stage), ins, None))
    return it
def a_items(stage):
    slot = stage % NA
    it = []
    for i in range(4, 8):
        pre = None
        if i % 4 == 0:
            pre = f"s_add_u32 m0, s{S_M0B}, {slot*A_SLOT + (i//4)*4096}"
        ins = [f"buffer_load_dwordx4 v{V_XOFF+i}, s[{S_X}:{S_X+3}], s{S_XOFF} offen offset:{(i&3)*1024} lds"]
        if i == 7:
            ins.append(f"s_add_u32 s{S_XOFF}, s{S_XOFF}, 128")
        it.append((("a", stage), ins, pre))
    return it
def emit_item(item):
    tag, ins, pre = item
    if pre is not None:
        e(pre)
        e("s_nop 0")
    for s in ins:
        e(s)
    vm.append(tag)
def younger(tag):
    idx = [i for i, t in enumerate(vm) if t == tag]
    if not idx:
        return None
    return len(vm) - 1 - max(idx)

for l in range(4 if opts["lswap"] else 8):
    e(f"s_mov_b32 s{S_TMP}, {l*7168}")
    e(f"buffer_load_dwordx2 v[{V_T+2*l}:{V_T+2*l+1}], v{V_LOFF}, s[{S_L}:{S_L+3}], s{S_TMP} offen")
    vm.append("L")
if not opts["ns"]:
    if opts["coop"]:
        e("s_barrier")
    for st_ in range(3):
        if opts["ps"] and st_ == opts["ps"]:
            e(f"s_setprio {opts['prio_p']}")
        for it in q_items(st_): emit_item(it)
srd(S_X, 4, XB)
e(f"s_lshl_b32 s{S_TMP}, s{S_PW}, 1")
e(f"v_add_u32 v3, s{S_TMP}, v1")
e("v_and_b32 v4, 7, v2")
e("v_lshlrev_b32 v5, 1, v2")
e("v_and_b32 v5, 7, v5")
e(f"v_cmp_gt_u32 s[{S_MASK}:{S_MASK+1}], 24, v2")
e("v_mov_b32 v7, 0x40000")
e("s_nop 0")
e(f"v_cndmask_b32 v4, v5, v4, s[{S_MASK}:{S_MASK+1}]")
e("v_xor_b32 v4, v3, v4")
e("v_lshlrev_b32 v4, 4, v4")
e("v_lshl_add_u32 v4, v2, 9, v4")
e(f"v_add_u32 v4, {B_BASE}, v4")
e(f"v_cndmask_b32 v{V_W}, v7, v4, vcc")
e(f"v_xor_b32 v4, 16, v{V_W}")
e(f"v_add_u32 v{V_W+1}, 256, v4")

if opts["pb"]:
    e(f"s_lshr_b32 s{S_TMP}, s2, 3")
    e(f"s_lshr_b32 s{S_BSTEP}, s{S_TMP}, 1")
    e(f"s_and_b32 s{S_TMP}, s{S_TMP}, 1")
    e(f"s_lshl_b32 s{S_BQ}, s{S_BSTEP}, 6")
    e(f"s_lshl_b32 s{S_TMP2}, s{S_TMP}, 5")
    e(f"s_add_u32 s{S_BQ}, s{S_BQ}, s{S_TMP2}")
    e(f"s_lshl_b32 s{S_TMP2}, s{S_PW}, 3")
    e(f"s_add_u32 s{S_BQ}, s{S_BQ}, s{S_TMP2}")
    e(f"s_mul_i32 s{S_BQ}, s{S_BQ}, 14336")
    e(f"s_and_b32 s{S_TMP2}, s2, 7")
    e(f"s_mul_i32 s{S_BX}, s{S_TMP2}, 1792")
    e(f"s_add_u32 s{S_BQ}, s{S_BQ}, s{S_BX}")
    e(f"s_lshl_b32 s{S_BX}, s{S_TMP2}, 1")
    e(f"s_add_u32 s{S_BX}, s{S_BX}, s{S_TMP}")
    e(f"s_lshl_b32 s{S_BX}, s{S_BX}, 2")
    e(f"s_add_u32 s{S_BX}, s{S_BX}, s{S_PW}")
    e(f"s_lshl_b32 s{S_BX}, s{S_BX}, 16")
    e(f"s_lshl_b32 s{S_TMP2}, s{S_BSTEP}, 7")
    e(f"s_add_u32 s{S_BX}, s{S_BX}, s{S_TMP2}")
    e("v_lshlrev_b32 v10, 4, v0")
    e("v_bfrev_b32 v11, 1")
    e("v_cmp_gt_u32 vcc, 56, v0")
    e("v_lshrrev_b32 v12, 3, v0")
    e("v_lshlrev_b32 v12, 11, v12")
    e(f"v_cndmask_b32 v8, v11, v10, vcc")
    e("v_and_b32 v11, 7, v0")
    e(f"v_lshl_add_u32 v9, v11, 4, v12")
    e(f"s_cmp_lt_u32 s{S_BSTEP}, {opts['bmin']}")
    e(f"s_cselect_b32 s{S_TMP}, 99, 0")
    e(f"s_sub_i32 s{S_BSTEP}, s{S_BSTEP}, {opts['bd']}")
    e(f"s_max_i32 s{S_BSTEP}, s{S_BSTEP}, 0")
    e(f"s_add_u32 s{S_BSTEP}, s{S_BSTEP}, s{S_TMP}")
    e(f"s_mov_b32 s{S_BCNT}, 0")
    e("s_mov_b32 s71, 0")
e(f"s_waitcnt vmcnt({younger('L')})")
stamp_now()
if opts["lswap"]:
    for k in range(8):
        e(f"v_mov_b32 v{V_T+8+k}, v{V_T+k}")
    e("s_nop 1")
    for k in range(8):
        e(f"v_permlane32_swap_b32 v{V_T+k}, v{V_T+8+k}")
    e("s_nop 1")
for d in range(2):
    for hb in range(2):
        t0, t1, t2, t3 = [V_T + 2 * (4 * hb + k) + d for k in range(4)]
        lo = (V_LO0, V_LO1)[hb]
        hi = (V_HI0, V_HI1)[hb]
        for cc in range(2):
            sc = (S_C0, S_C1)[cc]
            col = 2 * d + cc
            e(f"v_perm_b32 v{V_PT}, v{t1}, v{t0}, s{sc}")
            e(f"v_perm_b32 v{V_PT+1}, v{t3}, v{t2}, s{sc}")
            e(f"v_perm_b32 v{lo+col}, v{V_PT+1}, v{V_PT}, s{S_C2}")
            e(f"v_perm_b32 v{hi+col}, v{V_PT+1}, v{V_PT}, s{S_C3}")

if opts["ns"]:
    if opts["coop"] and not opts["nopre"]:
        e("s_barrier")
    for st_ in range(opts["ns"]):
        for it in q_items(st_): emit_item(it)
    if opts["ps"]:
        e(f"s_setprio {opts['prio_p']}")
AL = opts["alead"]
sched = {-1: [("q", k) for k in range(opts["ns"], 3)] if opts["ns"] else []}
for s in range(0, 15):
    g = []
    if opts["hs"] and s + 2 < NSTEP: g.append(("a", s + 2))
    if s + 3 < NSTEP: g.append(("q", s + 3))
    sched[s] = g

def p_body(s):
    st = s + 1
    base = V_Q + (st % PQ) * 32
    Q = lambda kk, i: base + kk * 4 + i
    bo = (st % NB) * B_SLOT
    valu = []
    for hb in range(2):
        for i in range(4):
            valu.append(f"v_lshl_or_b32 v{V_PT+hb*8+i*2}, v{Q(4*hb+1,i)}, 8, v{Q(4*hb,i)}")
            valu.append(f"v_lshl_or_b32 v{V_PT+hb*8+i*2+1}, v{Q(4*hb+3,i)}, 8, v{Q(4*hb+2,i)}")
    for hb in range(2):
        for i in range(4):
            valu.append(f"v_lshl_or_b32 v{V_SEL+hb*4+i}, v{V_PT+hb*8+i*2+1}, 16, v{V_PT+hb*8+i*2}")
    for i in range(4):
        for hb in range(2):
            valu.append(f"v_perm_b32 v{V_LH+i*4+hb*2}, v{V_LO1+i}, v{V_LO0+i}, v{V_SEL+hb*4+i}")
            valu.append(f"v_perm_b32 v{V_LH+i*4+hb*2+1}, v{V_HI1+i}, v{V_HI0+i}, v{V_SEL+hb*4+i}")
    for i in range(4):
        for hb in range(2):
            valu.append(f"v_perm_b32 v{V_OUTB+i*4+hb*2}, v{V_LH+i*4+hb*2+1}, v{V_LH+i*4+hb*2}, s{S_C0}")
            valu.append(f"v_perm_b32 v{V_OUTB+i*4+hb*2+1}, v{V_LH+i*4+hb*2+1}, v{V_LH+i*4+hb*2}, s{S_C1}")
        valu.append(f"ds_write_b128 v{V_W+(i>>1)}, v[{V_OUTB+i*4}:{V_OUTB+i*4+3}] offset:{bo + (i&1)*128}")
    items = []
    for kind, stage in sched[s]:
        items += q_items(stage) if kind == "q" else a_items(stage)
    yq = younger(('q', st))
    if opts["pb"] and s >= 1:
        e("s_cmp_eq_u32 s71, 0")
        e(f"s_cbranch_scc1 L_pw{s}a")
        e(f"s_waitcnt vmcnt({yq + 20})")
        e("s_sub_u32 s71, s71, 1")
        e(f"s_branch L_pw{s}b")
        lab(f"L_pw{s}a")
        e(f"s_waitcnt vmcnt({yq})")
        lab(f"L_pw{s}b")
    else:
        e(f"s_waitcnt vmcnt({yq})")
    n = len(items)
    nv = len(valu)
    if s == -1 and not opts["ns"]:
        pos = [nv] * n
    else:
        pos = [(k * nv) // n for k in range(n)]
        if opts["qsp"]:
            pos = [k * (opts["qsp"] - 1) for k in range(n)]
    k = 0
    for vi in range(nv + 1):
        while k < n and pos[k] == vi:
            emit_item(items[k])
            k += 1
        if vi < nv:
            e(valu[vi])
    if opts["pb"] and 0 <= s <= 12:
        e(f"s_cmp_lg_u32 s{S_BCNT}, s{S_BSTEP}")
        e(f"s_cbranch_scc1 L_pbs{s}")
        e(f"s_getpc_b64 s[{S_RET}:{S_RET+1}]")
        e(f"s_add_u32 s{S_RET}, s{S_RET}, 12")
        e(f"s_addc_u32 s{S_RET+1}, s{S_RET+1}, 0")
        e("s_branch L_pburst")
        lab(f"L_pbs{s}")
        e(f"s_add_u32 s{S_BCNT}, s{S_BCNT}, 1")
    y = younger(("a", st))
    if y is None:
        e("s_waitcnt lgkmcnt(0)")
    else:
        e(f"s_waitcnt vmcnt({y}) lgkmcnt(0)")
    stamp_commit()
    e("s_barrier")
    stamp()

bodies = {}
for s in range(-1, 15):
    start = len(out)
    p_body(s)
    bodies[s] = out[start:]
    del out[start:]
for s in range(1, 5):
  for rep in (4, 8):
    a, b = bodies[s], bodies[s + rep]
    assert len(a) == len(b)
    for i in range(len(a)):
        if re.sub(r"L_p(w|bs)\d+", "L", a[i]) == re.sub(r"L_p(w|bs)\d+", "L", b[i]): continue
        if a[i] != b[i]:
            ma = re.match(r"(\s*s_waitcnt vmcnt\()(\d+)(\).*)", a[i])
            mb = re.match(r"(\s*s_waitcnt vmcnt\()(\d+)(\).*)", b[i])
            assert ma and mb and ma.group(3) == mb.group(3), (a[i], b[i])
            a[i] = ma.group(1) + str(min(int(ma.group(2)), int(mb.group(2)))) + ma.group(3)
stamp()
for s in range(-1, 1):
    out.extend(bodies[s])
e(f"s_mov_b32 s{S_LOOP}, 0")
lab("L_ploop")
for s in range(1, 5):
    out.extend(bodies[s])
e(f"s_add_u32 s{S_LOOP}, s{S_LOOP}, 1")
e(f"s_cmp_lt_u32 s{S_LOOP}, 3")
e("s_cbranch_scc1 L_ploop")
for s in range(13, 15):
    out.extend(bodies[s])
if opts["diag"]:
    e("s_waitcnt lgkmcnt(0)")
    stamp_commit()
    stamp_flush()
if opts["pb"]:
    e("s_endpgm")
    lab("L_pburst")
    for r in range(8):
        for hf in range(2):
            e(f"buffer_load_dwordx4 v[12:15], v8, s[{S_Q}:{S_Q+3}], s{S_BQ} offen offset:{hf*896}")
        e(f"s_add_u32 s{S_BQ}, s{S_BQ}, 14336")
        if r % 2 == 1:
            e(f"buffer_load_dwordx4 v[12:15], v9, s[{S_X}:{S_X+3}], s{S_BX} offen")
            e(f"s_add_u32 s{S_BX}, s{S_BX}, 16384")
    e("s_mov_b32 s71, 2")
    e(f"s_setpc_b64 s[{S_RET}:{S_RET+1}]")
lab("L_end")
e("s_endpgm")
lab("L_codeend")

out.append(f""".section .rodata,"a"
.p2align 6
.amdhsa_kernel {NAME}_kernel
  .amdhsa_next_free_vgpr 256
  .amdhsa_next_free_sgpr 80
  .amdhsa_accum_offset 256
  .amdhsa_group_segment_fixed_size 0
  .amdhsa_kernarg_size 48
  .amdhsa_user_sgpr_count 2
  .amdhsa_user_sgpr_kernarg_segment_ptr 1
  .amdhsa_system_sgpr_workgroup_id_x 1
.end_amdhsa_kernel""")

open(sys.argv[1], "w").write("\n".join(out) + "\n")
```

```python
import sys, re

NAME = "standalone__weight_only_int_squeezellm__prompt"
NA = 4
NB = 2
PQ = 4
NSTEP = 16
A_SLOT = 32768
B_BASE = NA * A_SLOT
B_SLOT = 14336
LDS = B_BASE + NB * B_SLOT

opts = dict(prio_c=0, prio_p=0, diag=0, dbg=0, stflag=1, bd=5, cpf=4, alead=2, lswap=1, ord=0, bmin=4, ps=2, dpos=12, dgap=4, fe=1, coop=4, cpe=0, bparts=1, bgap=1, pb=0, alead3=0, qsp=0, bcp=11, w0=12, ns=1, swap=0, nopre=1, hs=0, qe=0, em=1)
for a in sys.argv[2:]:
    k, v = a.split("=")
    opts[k] = int(v)

out = []
def e(s):
    out.append("    " + s)
def lab(s):
    out.append(s + ":")

S_X, S_Q, S_L, S_O = 12, 16, 20, 24
S_MT, S_NT, S_M0, S_N0 = 28, 29, 30, 31
S_C0, S_C1, S_C2, S_C3 = 32, 33, 34, 35
S_WAVE = 36
S_PW = 37
S_MASK = 38
S_QOFF = 40
S_XOFF = 41
S_TMP = 42
S_TMP2 = 43
S_OOFF = 44
S_BSTEP, S_BCNT, S_BQ = 45, 46, 47
S_LOOP = 48
S_M0B = 49
S_RET = 50
S_ST = 52
S_SI = 54
S_BX = 55
S_PC = 64
V_STAMP = [250]
def stamp():
    if not opts["diag"]: return
    e(f"s_memrealtime s[{S_ST}:{S_ST+1}]" if opts["diag"] == 2 else f"s_memtime s[{S_ST}:{S_ST+1}]")
def stamp_commit():
    if not opts["diag"]: return
    e(f"v_cmp_eq_u32 vcc, s{S_SI}, v0")
    e(f"v_mov_b32 v{V_STAMP[0]+1}, s{S_ST}")
    e("s_nop 0")
    e(f"v_cndmask_b32 v{V_STAMP[0]}, v{V_STAMP[0]}, v{V_STAMP[0]+1}, vcc")
    e(f"s_add_u32 s{S_SI}, s{S_SI}, 1")
def stamp_now():
    if not opts["diag"]: return
    stamp()
    e("s_waitcnt lgkmcnt(0)")
    stamp_commit()
def stamp_flush():
    if not opts["diag"]: return
    e("s_mov_b64 exec, -1")
    e("s_load_dwordx2 s[56:57], s[0:1], 40")
    e("s_waitcnt vmcnt(0) lgkmcnt(0)")
    stamp_now()
    e("s_mov_b32 s60, s56")
    e("s_and_b32 s61, s57, 0xffff")
    e("s_mov_b32 s62, 0x100000")
    e("s_mov_b32 s63, 0x00020000")
    e(f"s_lshl_b32 s58, s2, 3")
    e(f"s_add_u32 s58, s58, s{S_WAVE}")
    e("s_lshl_b32 s58, s58, 8")
    e("v_lshlrev_b32 v1, 2, v0")
    e(f"buffer_store_dword v{V_STAMP[0]}, v1, s[60:63], s58 offen")

def srd(d, lo, nbytes):
    e(f"s_mov_b32 s{d}, s{lo}")
    e(f"s_and_b32 s{d+1}, s{lo+1}, 0xffff")
    e(f"s_mov_b32 s{d+2}, {nbytes}")
    e(f"s_mov_b32 s{d+3}, 0x00020000")

XB, QB, LB, OB = 2048 * 1024 * 2, 1024 * 3584 * 4, 8 * 3584 * 2, 2048 * 3584 * 2

out.append(f"""; fused SqueezeLLM LUT dequant + bf16 MFMA GEMM, 256x112 tile per workgroup, 4 consumer + 4 producer waves
; @launch grid=(256,1,1) block=(512,1,1) lds={LDS}
.amdgcn_target "amdgcn-amd-amdhsa--gfx950"
.text
.globl {NAME}_kernel
.p2align 8
.type {NAME}_kernel,@function
{NAME}_kernel:""")

e("s_cmp_ge_u32 s2, 256")
e("s_cbranch_scc1 L_end")
e("s_load_dwordx8 s[4:11], s[0:1], 0")
if opts["cpe"]:
    e(f"s_getpc_b64 s[{S_PC}:{S_PC+1}]")
    lab("L_pc0")
    e("v_lshlrev_b32 v2, 4, v0")
    e(f"s_sub_u32 s{S_PC}, s{S_PC}, L_pc0-{NAME}_kernel")
    e(f"s_subb_u32 s{S_PC+1}, s{S_PC+1}, 0")
    e(f"global_load_dwordx4 v[244:247], v2, s[{S_PC}:{S_PC+1}]")
    e("v_add_u32 v2, 0x2000, v2")
    e(f"v_min_u32 v3, L_codeend-{NAME}_kernel-16, v2")
    e(f"global_load_dwordx4 v[244:247], v3, s[{S_PC}:{S_PC+1}]")
if opts["dbg"]:
    e("s_memtime s[72:73]")
    e("s_memrealtime s[74:75]")
if opts["diag"]:
    e(f"s_mov_b32 s{S_SI}, 1")
    stamp()
e(f"s_and_b32 s{S_MT}, s2, 7")
e(f"s_lshr_b32 s{S_NT}, s2, 3")
e(f"s_and_b32 s{S_NT}, s{S_NT}, 3")
e(f"s_lshl_b32 s{S_MT}, s{S_MT}, 2")
e(f"s_add_u32 s{S_NT}, s{S_NT}, s{S_MT}")
e(f"s_lshr_b32 s{S_MT}, s2, 5")
e(f"s_lshl_b32 s{S_M0}, s{S_MT}, 8")
e(f"s_mul_i32 s{S_N0}, s{S_NT}, 112")
e("v_lshrrev_b32 v1, 6, v0")
e("v_and_b32 v0, 63, v0")
e(f"s_mov_b32 s{S_C0}, 0x05010400")
e(f"v_readfirstlane_b32 s{S_WAVE}, v1")
e(f"s_mov_b32 s{S_C1}, 0x07030602")
e(f"s_mov_b32 s{S_C2}, 0x05040100")
e(f"s_mov_b32 s{S_C3}, 0x07060302")
if opts["swap"]:
    e(f"s_xor_b32 s{S_WAVE}, s{S_WAVE}, 4")
e(f"s_and_b32 s{S_PW}, s{S_WAVE}, 3")
V_XOFF = 24
e("v_lshrrev_b32 v3, 3, v0")
e("v_and_b32 v4, 7, v0")
e("v_lshrrev_b32 v5, 4, v0")
e("v_xor_b32 v4, v4, v5")
e("v_lshlrev_b32 v4, 4, v4")
e("v_lshl_add_u32 v3, v3, 11, v4")
e(f"s_lshl_b32 s{S_TMP}, s{S_PW}, 6")
e(f"s_add_u32 s{S_TMP}, s{S_TMP}, s{S_M0}")
e(f"s_lshl_b32 s{S_TMP}, s{S_TMP}, 11")
e(f"v_add_u32 v3, s{S_TMP}, v3")
e("v_xor_b32 v4, 64, v3")
for i in range(8):
    src = 4 if (i & 1) else 3
    e(f"v_add_u32 v{V_XOFF+i}, {i*16384 - (i&3)*1024}, v{src}")
e(f"s_lshl_b32 s{S_M0B}, s{S_PW}, 13")
e(f"s_cmp_ge_u32 s{S_WAVE}, 4")
e("s_cbranch_scc1 L_producer")

V_A = 2
V_B = 6
V_B6 = 10
V_OUT = 12
V_EW = 13
V_EW6 = 14
V_ER = 15
X = [32, 76]
W = [48, 92]
ACC = 128
CVT = 32
ERS = 240
V_PQO, V_PXO, V_PD = 240, 241, 244
def acc(t, mt):
    return ACC + (t * 4 + mt) * 4

if opts["cpf"] and not opts["cpe"]:
    e(f"s_getpc_b64 s[{S_PC}:{S_PC+1}]")
    lab("L_pc")
    e(f"s_sub_u32 s{S_PC}, s{S_PC}, L_pc-{NAME}_kernel")
    e(f"s_subb_u32 s{S_PC+1}, s{S_PC+1}, 0")
    e(f"s_lshl_b32 s{S_TMP}, s{S_WAVE}, 10")
    e("v_lshlrev_b32 v2, 4, v0")
    e(f"v_add_u32 v2, s{S_TMP}, v2")
    for k in range(opts["cpf"]):
        e(f"v_min_u32 v3, L_codeend-{NAME}_kernel-16, v2")
        e(f"global_load_dwordx4 v[{V_PD}:{V_PD+3}], v3, s[{S_PC}:{S_PC+1}]")
        e("v_add_u32 v2, 0x1000, v2")
if opts["prio_c"]:
    e(f"s_setprio {opts['prio_c']}")
e("s_waitcnt lgkmcnt(0)")
srd(S_X, 4, XB)
if opts["diag"]:
    e(f"v_mov_b32 v{V_STAMP[0]}, s{S_ST}")
if opts["coop"]:
    srd(S_Q, 6, QB)
    e(f"s_lshr_b32 s{S_TMP}, s2, 3")
    e(f"s_lshl_b32 s{S_TMP}, s{S_TMP}, 1")
    e(f"s_lshr_b32 s{S_TMP2}, s{S_WAVE}, 1")
    e(f"s_add_u32 s{S_TMP}, s{S_TMP}, s{S_TMP2}")
    e(f"s_mul_i32 s{S_TMP}, s{S_TMP}, 14336")
    e(f"s_and_b32 s{S_TMP2}, s2, 7")
    e(f"s_mul_i32 s{S_TMP2}, s{S_TMP2}, 1792")
    e(f"s_add_u32 s{S_TMP}, s{S_TMP}, s{S_TMP2}")
    e(f"s_and_b32 s{S_TMP2}, s{S_WAVE}, 1")
    e(f"s_mul_i32 s{S_TMP2}, s{S_TMP2}, 896")
    e(f"s_add_u32 s{S_BQ}, s{S_TMP}, s{S_TMP2}")
    e("v_lshlrev_b32 v1, 4, v0")
    e("v_bfrev_b32 v2, 1")
    e("v_cmp_gt_u32 vcc, 56, v0")
    e("v_lshrrev_b32 v3, 3, v0")
    e("v_lshlrev_b32 v3, 11, v3")
    e(f"v_cndmask_b32 v{V_PQO}, v2, v1, vcc")
    e("v_and_b32 v2, 7, v0")
    e(f"v_lshl_add_u32 v{V_PXO}, v2, 4, v3")
    e(f"s_lshl_b32 s{S_BX}, s2, 14")
    e(f"s_lshl_b32 s{S_TMP}, s{S_WAVE}, 7")
    e(f"s_add_u32 s{S_BX}, s{S_BX}, s{S_TMP}")
    for st_ in range(opts["coop"]):
        e(f"buffer_load_dwordx4 v[{V_PD}:{V_PD+3}], v{V_PQO}, s[{S_Q}:{S_Q+3}], s{S_BQ} offen")
        e(f"s_add_u32 s{S_BQ}, s{S_BQ}, {64*14336}")
        if st_ % 4 == 0:
            if st_ + 4 > opts["coop"]:
                e(f"s_cmp_ge_u32 s{S_WAVE}, {opts['coop'] - st_}")
                e(f"s_cbranch_scc1 L_cx{st_}")
            e(f"buffer_load_dwordx4 v[{V_PD}:{V_PD+3}], v{V_PXO}, s[{S_X}:{S_X+3}], s{S_BX} offen offset:{st_*128}")
            lab(f"L_cx{st_}")
    if not opts["nopre"]:
        e("s_waitcnt vmcnt(0)")
        e("s_barrier")
for stg in range(2):
    e(f"s_mov_b32 s{S_XOFF}, {stg*128}")
    for i in range(8):
        if i % 4 == 0:
            e(f"s_add_u32 m0, s{S_M0B}, {stg*A_SLOT + (i//4)*4096}")
            e("s_nop 0")
        e(f"buffer_load_dwordx4 v{V_XOFF+i}, s[{S_X}:{S_X+3}], s{S_XOFF} offen offset:{(i&3)*1024} lds")
e(f"s_mov_b32 s{S_XOFF}, 256")
e(f"s_add_u32 m0, s{S_M0B}, {2*A_SLOT}")
e("s_nop 0")
for i in range(4):
    e(f"buffer_load_dwordx4 v{V_XOFF+i}, s[{S_X}:{S_X+3}], s{S_XOFF} offen offset:{(i&3)*1024} lds")
if opts["hs"]:
    e(f"s_mov_b32 s{S_XOFF}, 384")
srd(S_Q, 6, QB)
srd(S_O, 10, OB)
e(f"s_lshr_b32 s{S_TMP}, s2, 3")
e(f"s_lshr_b32 s{S_BSTEP}, s{S_TMP}, 1")
e(f"s_and_b32 s{S_TMP}, s{S_TMP}, 1")
e(f"s_lshl_b32 s{S_BQ}, s{S_BSTEP}, 6")
e(f"s_lshl_b32 s{S_TMP2}, s{S_TMP}, 5")
e(f"s_add_u32 s{S_BQ}, s{S_BQ}, s{S_TMP2}")
e(f"s_lshl_b32 s{S_TMP2}, s{S_WAVE}, 3")
e(f"s_add_u32 s{S_BQ}, s{S_BQ}, s{S_TMP2}")
e(f"s_mul_i32 s{S_BQ}, s{S_BQ}, 14336")
e(f"s_and_b32 s{S_TMP2}, s2, 7")
e(f"s_mul_i32 s{S_BX}, s{S_TMP2}, 1792")
e(f"s_add_u32 s{S_BQ}, s{S_BQ}, s{S_BX}")
e(f"s_lshl_b32 s{S_BX}, s{S_TMP2}, 1")
e(f"s_add_u32 s{S_BX}, s{S_BX}, s{S_TMP}")
e(f"s_lshl_b32 s{S_BX}, s{S_BX}, 2")
e(f"s_add_u32 s{S_BX}, s{S_BX}, s{S_WAVE}")
e(f"s_lshl_b32 s{S_BX}, s{S_BX}, 16")
e(f"s_lshl_b32 s{S_TMP2}, s{S_BSTEP}, 7")
e(f"s_add_u32 s{S_BX}, s{S_BX}, s{S_TMP2}")
e("v_lshlrev_b32 v1, 4, v0")
e("v_bfrev_b32 v2, 1")
e("v_cmp_gt_u32 vcc, 56, v0")
e("v_lshrrev_b32 v3, 3, v0")
e("v_lshlrev_b32 v3, 11, v3")
e(f"v_cndmask_b32 v{V_PQO}, v2, v1, vcc")
e("v_and_b32 v2, 7, v0")
e(f"v_lshl_add_u32 v{V_PXO}, v2, 4, v3")
e(f"s_cmp_lt_u32 s{S_BSTEP}, {opts['bmin']}")
e(f"s_cselect_b32 s{S_TMP}, 99, 0")
e(f"s_sub_i32 s{S_BSTEP}, s{S_BSTEP}, {opts['bd']}")
e(f"s_max_i32 s{S_BSTEP}, s{S_BSTEP}, 0")
e(f"s_add_u32 s{S_BSTEP}, s{S_BSTEP}, s{S_TMP}")
e(f"s_mov_b32 s{S_BCNT}, 0")
e("s_mov_b32 s71, 0")
e(f"s_mov_b32 s72, s{S_BSTEP}")
NBURST = 20 // opts["bparts"]
bcount = 0
def burst_check():
    global bcount
    if opts["pb"]: return
    bcount += 1
    e(f"s_cmp_lg_u32 s{S_BCNT}, s{S_BSTEP}")
    e(f"s_cbranch_scc1 L_bskip{bcount}")
    e(f"s_getpc_b64 s[{S_RET}:{S_RET+1}]")
    e(f"s_add_u32 s{S_RET}, s{S_RET}, 12")
    e(f"s_addc_u32 s{S_RET+1}, s{S_RET+1}, 0")
    e("s_branch L_burst")
    lab(f"L_bskip{bcount}")
    e(f"s_add_u32 s{S_BCNT}, s{S_BCNT}, 1")
burst_check()
e("v_and_b32 v110, 15, v0")
e("v_lshrrev_b32 v111, 4, v0")
e(f"s_lshl_b32 s{S_TMP}, s{S_WAVE}, 13")
e("v_lshrrev_b32 v1, 1, v110")
e("v_xor_b32 v1, v111, v1")
e("v_lshlrev_b32 v1, 4, v1")
e("v_lshl_add_u32 v104, v110, 7, v1")
e(f"v_add_u32 v{V_A}, s{S_TMP}, v104")
e(f"v_add_u32 v{V_A+1}, 0x10000, v{V_A}")
e(f"v_xor_b32 v{V_A+2}, 64, v{V_A}")
e(f"v_xor_b32 v{V_A+3}, 64, v{V_A+1}")
e(f"v_add_u32 v{V_B6}, {B_BASE + 96*128}, v104")
e(f"v_xor_b32 v{V_B6+1}, 64, v{V_B6}")
e("v_lshrrev_b32 v1, 2, v110")
e("v_and_b32 v105, 3, v110")
e("v_lshl_add_u32 v105, v1, 3, v105")
e("v_lshlrev_b32 v105, 7, v105")
e("v_lshlrev_b32 v1, 1, v1")
e("v_xor_b32 v1, v111, v1")
e("v_bfe_u32 v106, v110, 1, 1")
e("v_xor_b32 v1, v1, v106")
e("v_lshl_add_u32 v105, v1, 4, v105")
e(f"v_add_u32 v{V_B}, {B_BASE}, v105")
e(f"v_xor_b32 v1, 16, v{V_B}")
e(f"v_add_u32 v{V_B+1}, 512, v1")
e(f"v_xor_b32 v{V_B+2}, 64, v{V_B}")
e(f"v_xor_b32 v{V_B+3}, 64, v{V_B+1}")
e(f"s_lshl_b32 s{S_TMP}, s{S_WAVE}, 14")
e(f"v_mul_u32_u24 v1, {ERS}, v110")
e(f"v_add_u32 v1, s{S_TMP}, v1")
e(f"v_lshl_add_u32 v{V_EW}, v111, 4, v1")
e(f"v_lshl_add_u32 v{V_EW6}, v111, 3, v1")
e("v_mul_u32_u24 v1, 4682, v0")
e("v_lshrrev_b32 v1, 16, v1")
e("v_mul_u32_u24 v105, 14, v1")
e("v_sub_u32 v105, v0, v105")
e(f"v_mul_u32_u24 v106, {ERS}, v1")
e("v_lshl_add_u32 v106, v105, 4, v106")
e(f"v_add_u32 v{V_ER}, s{S_TMP}, v106")
e(f"s_lshl_b32 s{S_TMP}, s{S_WAVE}, 6")
e(f"s_add_u32 s{S_TMP}, s{S_TMP}, s{S_M0}")
e(f"v_add_u32 v1, s{S_TMP}, v1")
e("v_mul_u32_u24 v1, 7168, v1")
e(f"s_lshl_b32 s{S_TMP2}, s{S_N0}, 1")
e(f"v_add_u32 v1, s{S_TMP2}, v1")
e(f"v_lshl_add_u32 v{V_OUT}, v105, 4, v1")
e("v_cmp_gt_u32 vcc, 56, v0")
e("v_bfrev_b32 v1, 1")
e("s_nop 0")
e(f"v_cndmask_b32 v{V_OUT}, v1, v{V_OUT}, vcc")
e(f"v_cndmask_b32 v{V_ER}, v{V_EW}, v{V_ER}, vcc")
for r in range(112):
    e(f"v_mov_b32 v{ACC+r}, 0")
if opts["pb"]:
    e("s_mov_b32 s72, 1")
e(f"s_cmp_eq_u32 s72, 0")
e("s_cbranch_scc1 L_cw1")
e(f"s_waitcnt vmcnt({opts['w0']})")
e("s_branch L_cw2")
lab("L_cw1")
e(f"s_waitcnt vmcnt({NBURST+opts['w0']})")
lab("L_cw2")

def c_reads(slotA, slotB, kh, st):
    r = []
    va = V_A + kh * 2 + (slotA >> 1)
    ao = (slotA & 1) * 32768
    bo = slotB * B_SLOT
    def xr(mt):
        return f"ds_read_b128 v[{X[st]+mt*4}:{X[st]+mt*4+3}], v{va} offset:{ao + mt*2048}"
    def wr(t):
        if t < 6:
            return f"ds_read_b128 v[{W[st]+t*4}:{W[st]+t*4+3}], v{V_B + kh*2 + (t&1)} offset:{bo + (t>>1)*4096}"
        return f"ds_read_b128 v[{W[st]+t*4}:{W[st]+t*4+3}], v{V_B6 + kh} offset:{bo}"
    r.append(wr(0))
    for mt in range(4):
        r.append(xr(mt))
    for t in range(1, 7):
        r.append(wr(t))
    return r

def mfma(t, mt, st):
    a = acc(t, mt)
    return f"v_mfma_f32_16x16x32_bf16 v[{a}:{a+3}], v[{W[st]+t*4}:{W[st]+t*4+3}], v[{X[st]+mt*4}:{X[st]+mt*4+3}], v[{a}:{a+3}]"

def c_phase(st, reads, dma, commit=False, endwait=None, bc=False):
    idx = 0
    dpos = [opts["dpos"] + k * opts["dgap"] for k in range(4)]
    for t in range(7):
        for mt in range(4):
            e(mfma(t, mt, st))
            if idx < len(reads):
                e(reads[idx])
            if bc and idx == opts["bcp"] - 1:
                burst_check()
            if dma is not None:
                slot, half = dma
                if idx == dpos[0] - 1:
                    e(f"s_add_u32 m0, s{S_M0B}, {slot*A_SLOT + half*4096}")
                if idx in dpos:
                    k = dpos.index(idx)
                    i = half * 4 + k
                    e(f"buffer_load_dwordx4 v{V_XOFF+i}, s[{S_X}:{S_X+3}], s{S_XOFF} offen offset:{k*1024} lds")
                    if k == 3 and (half == 1 or opts["hs"]):
                        e(f"s_add_u32 s{S_XOFF}, s{S_XOFF}, 128")
            idx += 1
    if endwait is not None:
        e(f"s_waitcnt vmcnt({endwait}) lgkmcnt(0)")
    else:
        e("s_waitcnt lgkmcnt(0)")
    if commit:
        stamp_commit()

assert 15 - opts["bd"] + (opts["bparts"] - 1) * opts["bgap"] <= 12
e("s_barrier")
stamp()
for r in c_reads(0, 0, 0, 0):
    e(r)
e(f"s_mov_b32 s{S_LOOP}, 0")
e("s_waitcnt lgkmcnt(0)")
stamp_commit()
lab("L_cloop")
for u in range(4):
    c_phase(0, c_reads(u % NA, u % NB, 1, 1), None if opts["hs"] else ((u + 2) % NA, 1), endwait=4 if opts["hs"] else 8)
    e("s_barrier")
    stamp()
    if opts["bcp"] == 0:
        burst_check()
    c_phase(1, c_reads((u + 1) % NA, (u + 1) % NB, 0, 0), ((u + 3) % NA, 0), True, bc=opts["bcp"] > 0)
e(f"s_add_u32 s{S_LOOP}, s{S_LOOP}, 1")
e(f"s_cmp_lt_u32 s{S_LOOP}, 3")
e("s_cbranch_scc1 L_cloop")
for s in range(12, 16):
    u = s % 4
    c_phase(0, c_reads(u % NA, u % NB, 1, 1), ((u + 2) % NA, 1) if (s + 2 < 16 and not opts["hs"]) else None,
            endwait=((4 if opts["hs"] else 8) if s <= 13 else (0 if s == 14 else None)))
    if s < 15:
        e("s_barrier")
        stamp()
        c_phase(1, c_reads((u + 1) % NA, (u + 1) % NB, 0, 0), ((u + 3) % NA, 0) if s + 3 < 16 else None, True)
stamp_now()
stf = ["", " nt", " sc1", " sc0 sc1"][opts["stflag"]]
lq = []
def lds(tag, ins):
    e(ins); lq.append(tag)
def lwait(tag):
    n = len(lq) - 1 - max(i for i, t in enumerate(lq) if t == tag)
    assert n <= 15
    e(f"s_waitcnt lgkmcnt({n})")
CV = 48
cvi = [0]
def cvt_group(mt, T):
    c = CV + (cvi[0] % 6) * 4
    cvi[0] += 1
    if T < 3:
        a, b = acc(2 * T, mt), acc(2 * T + 1, mt)
        e(f"v_cvt_pk_bf16_f32 v{c}, v{a}, v{a+1}")
        e(f"v_cvt_pk_bf16_f32 v{c+1}, v{a+2}, v{a+3}")
        e(f"v_cvt_pk_bf16_f32 v{c+2}, v{b}, v{b+1}")
        e(f"v_cvt_pk_bf16_f32 v{c+3}, v{b+2}, v{b+3}")
        lds(("w", mt), f"ds_write_b128 v{V_EW}, v[{c}:{c+3}] offset:{mt*16*ERS + T*64}")
    else:
        a = acc(6, mt)
        e(f"v_cvt_pk_bf16_f32 v{c}, v{a}, v{a+1}")
        e(f"v_cvt_pk_bf16_f32 v{c+1}, v{a+2}, v{a+3}")
        lds(("w", mt), f"ds_write_b64 v{V_EW6}, v[{c}:{c+1}] offset:{mt*16*ERS + 192}")
def rb_read(mt):
    lwait(("w", mt))
    for k in range(4):
        r = 16 + (mt & 1) * 16 + k * 4
        lds(("r", mt, k), f"ds_read_b128 v[{r}:{r+3}], v{V_ER} offset:{(mt*4+k)*4*ERS}")
def rb_store(mt, k):
    lwait(("r", mt, k))
    r = 16 + (mt & 1) * 16 + k * 4
    e(f"s_mov_b32 s{S_OOFF}, {(mt*4+k)*4*7168}")
    e(f"buffer_store_dwordx4 v[{r}:{r+3}], v{V_OUT}, s[{S_O}:{S_O+3}], s{S_OOFF} offen{stf}")
for mt in range(4):
    for t in range(7):
        e(mfma(t, mt, 1))
        if mt >= 2 and t == 0:
            rb_read(mt - 2)
        if mt >= 1 and 2 <= t <= 5:
            cvt_group(mt - 1, t - 2)
        if mt >= 2 and t >= 3:
            rb_store(mt - 2, t - 3)
rb_read(2)
e("s_nop 4")
for T in range(4):
    cvt_group(3, T)
    rb_store(2, T)
rb_read(3)
for k in range(4):
    rb_store(3, k)
stamp_flush()
if opts["dbg"]:
    e("s_mov_b64 exec, -1")
    e("s_load_dwordx2 s[56:57], s[0:1], 32")
    e("s_waitcnt vmcnt(0) lgkmcnt(0)")
    e("s_memtime s[68:69]")
    e("s_memrealtime s[70:71]")
    e("s_waitcnt lgkmcnt(0)")
    e("s_sub_u32 s68, s68, s72")
    e("s_sub_u32 s70, s70, s74")
    e("s_mov_b32 s60, s56")
    e("s_and_b32 s61, s57, 0xffff")
    e("s_mov_b32 s62, 256")
    e("s_mov_b32 s63, 0x00020000")
    e(f"s_cmp_lg_u32 s{S_WAVE}, 0")
    e("s_cbranch_scc1 L_dbgdone")
    e("s_and_b32 s58, s2, 31")
    e("s_cmp_lg_u32 s58, 0")
    e("s_cbranch_scc1 L_dbgdone")
    e("s_lshr_b32 s58, s2, 5")
    e("s_lshl_b32 s58, s58, 3")
    e("v_mov_b32 v2, s68")
    e("v_mov_b32 v3, s70")
    e("v_mov_b32 v1, 0")
    e("s_mov_b64 exec, 1")
    e("buffer_store_dwordx2 v[2:3], v1, s[60:63], s58 offen")
    lab("L_dbgdone")
e("s_endpgm")
lab("L_burst")
S_BPART = 71
for r in range(8 // opts["bparts"]):
    for hf in range(2):
        e(f"buffer_load_dwordx4 v[{V_PD}:{V_PD+3}], v{V_PQO}, s[{S_Q}:{S_Q+3}], s{S_BQ} offen offset:{hf*896}")
    e(f"s_add_u32 s{S_BQ}, s{S_BQ}, 14336")
    if r % 2 == 1:
        e(f"buffer_load_dwordx4 v[{V_PD}:{V_PD+3}], v{V_PXO}, s[{S_X}:{S_X+3}], s{S_BX} offen")
        e(f"s_add_u32 s{S_BX}, s{S_BX}, 16384")
if opts["bparts"] > 1:
    e(f"s_add_u32 s{S_BSTEP}, s{S_BSTEP}, {opts['bgap']}")
    e(f"s_add_u32 s71, s71, 1")
    e(f"s_cmp_ge_u32 s71, {opts['bparts']}")
    e(f"s_cselect_b32 s{S_BSTEP}, 99, s{S_BSTEP}")
e(f"s_setpc_b64 s[{S_RET}:{S_RET+1}]")

lab("L_producer")
V_STAMP[0] = 124
V_QOFF = 16
V_W = 32
V_LOFF = 34
V_LO0, V_LO1, V_HI0, V_HI1 = 36, 40, 44, 48
V_SEL = 52
V_PT = 60
V_OUTB = 76
V_T = 92
V_LH = 108
V_Q = 128

if opts["ps"]:
    e("s_setprio 3")
e("v_lshrrev_b32 v1, 5, v0")
e("v_and_b32 v2, 31, v0")
e("v_cmp_gt_u32 vcc, 28, v2")
e("v_bfrev_b32 v6, 1")
e(f"s_mul_i32 s{S_TMP}, s{S_PW}, 229376")
e(f"s_lshl_b32 s{S_TMP2}, s{S_N0}, 2")
e(f"s_add_u32 s{S_TMP}, s{S_TMP}, s{S_TMP2}")
e("v_mul_u32_u24 v3, 114688, v1")
e("v_lshl_add_u32 v3, v2, 4, v3")
e(f"v_add_u32 v3, s{S_TMP}, v3")
e(f"v_cndmask_b32 v{V_QOFF}, v6, v3, vcc")
for kk in range(1, 8):
    e(f"v_add_u32 v{V_QOFF+kk}, {kk*14336}, v{V_QOFF}")
e(f"s_lshl_b32 s{S_TMP2}, s{S_N0}, 1")
e("v_lshlrev_b32 v3, 3, v2")
e(f"v_add_u32 v3, s{S_TMP2}, v3")
if opts["lswap"]:
    e("v_mul_u32_u24 v4, 28672, v1")
    e("v_add_u32 v3, v3, v4")
e(f"v_cndmask_b32 v{V_LOFF}, v6, v3, vcc")
e(f"s_mov_b32 s{S_XOFF}, 256")
e(f"s_mov_b32 s{S_QOFF}, 0")
e("s_waitcnt lgkmcnt(0)")
srd(S_L, 8, LB)
srd(S_Q, 6, QB)
if opts["diag"]:
    e(f"v_mov_b32 v{V_STAMP[0]}, s{S_ST}")

vm = []
def q_items(stage):
    base = V_Q + (stage % PQ) * 32
    it = []
    for kk in range(8):
        ins = [f"buffer_load_dwordx4 v[{base+kk*4}:{base+kk*4+3}], v{V_QOFF+kk}, s[{S_Q}:{S_Q+3}], s{S_QOFF} offen"]
        if kk == 7:
            ins.append(f"s_add_u32 s{S_QOFF}, s{S_QOFF}, {64*14336}")
        it.append((("q", stage), ins, None))
    return it
def a_items(stage):
    slot = stage % NA
    it = []
    for i in range(4, 8):
        pre = None
        if i % 4 == 0:
            pre = f"s_add_u32 m0, s{S_M0B}, {slot*A_SLOT + (i//4)*4096}"
        ins = [f"buffer_load_dwordx4 v{V_XOFF+i}, s[{S_X}:{S_X+3}], s{S_XOFF} offen offset:{(i&3)*1024} lds"]
        if i == 7:
            ins.append(f"s_add_u32 s{S_XOFF}, s{S_XOFF}, 128")
        it.append((("a", stage), ins, pre))
    return it
def emit_item(item):
    tag, ins, pre = item
    if pre is not None:
        e(pre)
        e("s_nop 0")
    for s in ins:
        e(s)
    vm.append(tag)
def younger(tag):
    idx = [i for i, t in enumerate(vm) if t == tag]
    if not idx:
        return None
    return len(vm) - 1 - max(idx)

for l in range(4 if opts["lswap"] else 8):
    e(f"s_mov_b32 s{S_TMP}, {l*7168}")
    e(f"buffer_load_dwordx2 v[{V_T+2*l}:{V_T+2*l+1}], v{V_LOFF}, s[{S_L}:{S_L+3}], s{S_TMP} offen")
    vm.append("L")
if opts["qe"]:
    for st_ in range(opts["ns"]):
        for it in q_items(st_): emit_item(it)
    if opts["ps"]:
        e(f"s_setprio {opts['prio_p']}")
if not opts["ns"]:
    if opts["coop"]:
        e("s_barrier")
    for st_ in range(3):
        if opts["ps"] and st_ == opts["ps"]:
            e(f"s_setprio {opts['prio_p']}")
        for it in q_items(st_): emit_item(it)
srd(S_X, 4, XB)
e(f"s_lshl_b32 s{S_TMP}, s{S_PW}, 1")
e(f"v_add_u32 v3, s{S_TMP}, v1")
e("v_and_b32 v4, 7, v2")
e("v_lshlrev_b32 v5, 1, v2")
e("v_and_b32 v5, 7, v5")
e(f"v_cmp_gt_u32 s[{S_MASK}:{S_MASK+1}], 24, v2")
e("v_mov_b32 v7, 0x40000")
e("s_nop 0")
e(f"v_cndmask_b32 v4, v5, v4, s[{S_MASK}:{S_MASK+1}]")
e("v_xor_b32 v4, v3, v4")
e("v_lshlrev_b32 v4, 4, v4")
e("v_lshl_add_u32 v4, v2, 9, v4")
e(f"v_add_u32 v4, {B_BASE}, v4")
e(f"v_cndmask_b32 v{V_W}, v7, v4, vcc")
e(f"v_xor_b32 v4, 16, v{V_W}")
e(f"v_add_u32 v{V_W+1}, 256, v4")

if opts["pb"]:
    e(f"s_lshr_b32 s{S_TMP}, s2, 3")
    e(f"s_lshr_b32 s{S_BSTEP}, s{S_TMP}, 1")
    e(f"s_and_b32 s{S_TMP}, s{S_TMP}, 1")
    e(f"s_lshl_b32 s{S_BQ}, s{S_BSTEP}, 6")
    e(f"s_lshl_b32 s{S_TMP2}, s{S_TMP}, 5")
    e(f"s_add_u32 s{S_BQ}, s{S_BQ}, s{S_TMP2}")
    e(f"s_lshl_b32 s{S_TMP2}, s{S_PW}, 3")
    e(f"s_add_u32 s{S_BQ}, s{S_BQ}, s{S_TMP2}")
    e(f"s_mul_i32 s{S_BQ}, s{S_BQ}, 14336")
    e(f"s_and_b32 s{S_TMP2}, s2, 7")
    e(f"s_mul_i32 s{S_BX}, s{S_TMP2}, 1792")
    e(f"s_add_u32 s{S_BQ}, s{S_BQ}, s{S_BX}")
    e(f"s_lshl_b32 s{S_BX}, s{S_TMP2}, 1")
    e(f"s_add_u32 s{S_BX}, s{S_BX}, s{S_TMP}")
    e(f"s_lshl_b32 s{S_BX}, s{S_BX}, 2")
    e(f"s_add_u32 s{S_BX}, s{S_BX}, s{S_PW}")
    e(f"s_lshl_b32 s{S_BX}, s{S_BX}, 16")
    e(f"s_lshl_b32 s{S_TMP2}, s{S_BSTEP}, 7")
    e(f"s_add_u32 s{S_BX}, s{S_BX}, s{S_TMP2}")
    e("v_lshlrev_b32 v10, 4, v0")
    e("v_bfrev_b32 v11, 1")
    e("v_cmp_gt_u32 vcc, 56, v0")
    e("v_lshrrev_b32 v12, 3, v0")
    e("v_lshlrev_b32 v12, 11, v12")
    e(f"v_cndmask_b32 v8, v11, v10, vcc")
    e("v_and_b32 v11, 7, v0")
    e(f"v_lshl_add_u32 v9, v11, 4, v12")
    e(f"s_cmp_lt_u32 s{S_BSTEP}, {opts['bmin']}")
    e(f"s_cselect_b32 s{S_TMP}, 99, 0")
    e(f"s_sub_i32 s{S_BSTEP}, s{S_BSTEP}, {opts['bd']}")
    e(f"s_max_i32 s{S_BSTEP}, s{S_BSTEP}, 0")
    e(f"s_add_u32 s{S_BSTEP}, s{S_BSTEP}, s{S_TMP}")
    e(f"s_mov_b32 s{S_BCNT}, 0")
    e("s_mov_b32 s71, 0")
e(f"s_waitcnt vmcnt({younger('L')})")
stamp_now()
if opts["lswap"]:
    for k in range(8):
        e(f"v_mov_b32 v{V_T+8+k}, v{V_T+k}")
    e("s_nop 1")
    for k in range(8):
        e(f"v_permlane32_swap_b32 v{V_T+k}, v{V_T+8+k}")
    e("s_nop 1")
for d in range(2):
    for hb in range(2):
        t0, t1, t2, t3 = [V_T + 2 * (4 * hb + k) + d for k in range(4)]
        lo = (V_LO0, V_LO1)[hb]
        hi = (V_HI0, V_HI1)[hb]
        for cc in range(2):
            sc = (S_C0, S_C1)[cc]
            col = 2 * d + cc
            e(f"v_perm_b32 v{V_PT}, v{t1}, v{t0}, s{sc}")
            e(f"v_perm_b32 v{V_PT+1}, v{t3}, v{t2}, s{sc}")
            e(f"v_perm_b32 v{lo+col}, v{V_PT+1}, v{V_PT}, s{S_C2}")
            e(f"v_perm_b32 v{hi+col}, v{V_PT+1}, v{V_PT}, s{S_C3}")

if opts["em"] and not opts["hs"] and not opts["pb"]:
    e(f"s_mov_b32 s{S_MASK}, 0x0fffffff")
    e(f"s_mov_b32 s{S_MASK+1}, 0x0fffffff")
    e(f"s_mov_b64 exec, s[{S_MASK}:{S_MASK+1}]")
if opts["ns"] and not opts["qe"]:
    if opts["coop"] and not opts["nopre"]:
        e("s_barrier")
    for st_ in range(opts["ns"]):
        for it in q_items(st_): emit_item(it)
    if opts["ps"]:
        e(f"s_setprio {opts['prio_p']}")
AL = opts["alead"]
sched = {-1: [("q", k) for k in range(opts["ns"], 3)] if opts["ns"] else []}
for s in range(0, 15):
    g = []
    if opts["hs"] and s + 2 < NSTEP: g.append(("a", s + 2))
    if s + 3 < NSTEP: g.append(("q", s + 3))
    sched[s] = g

def p_body(s):
    st = s + 1
    base = V_Q + (st % PQ) * 32
    Q = lambda kk, i: base + kk * 4 + i
    bo = (st % NB) * B_SLOT
    valu = []
    for hb in range(2):
        for i in range(4):
            valu.append(f"v_lshl_or_b32 v{V_PT+hb*8+i*2}, v{Q(4*hb+1,i)}, 8, v{Q(4*hb,i)}")
            valu.append(f"v_lshl_or_b32 v{V_PT+hb*8+i*2+1}, v{Q(4*hb+3,i)}, 8, v{Q(4*hb+2,i)}")
    for hb in range(2):
        for i in range(4):
            valu.append(f"v_lshl_or_b32 v{V_SEL+hb*4+i}, v{V_PT+hb*8+i*2+1}, 16, v{V_PT+hb*8+i*2}")
    for i in range(4):
        for hb in range(2):
            valu.append(f"v_perm_b32 v{V_LH+i*4+hb*2}, v{V_LO1+i}, v{V_LO0+i}, v{V_SEL+hb*4+i}")
            valu.append(f"v_perm_b32 v{V_LH+i*4+hb*2+1}, v{V_HI1+i}, v{V_HI0+i}, v{V_SEL+hb*4+i}")
    for i in range(4):
        for hb in range(2):
            valu.append(f"v_perm_b32 v{V_OUTB+i*4+hb*2}, v{V_LH+i*4+hb*2+1}, v{V_LH+i*4+hb*2}, s{S_C0}")
            valu.append(f"v_perm_b32 v{V_OUTB+i*4+hb*2+1}, v{V_LH+i*4+hb*2+1}, v{V_LH+i*4+hb*2}, s{S_C1}")
        valu.append(f"ds_write_b128 v{V_W+(i>>1)}, v[{V_OUTB+i*4}:{V_OUTB+i*4+3}] offset:{bo + (i&1)*128}")
    items = []
    for kind, stage in sched[s]:
        items += q_items(stage) if kind == "q" else a_items(stage)
    yq = younger(('q', st))
    if opts["pb"] and s >= 1:
        e("s_cmp_eq_u32 s71, 0")
        e(f"s_cbranch_scc1 L_pw{s}a")
        e(f"s_waitcnt vmcnt({yq + 20})")
        e("s_sub_u32 s71, s71, 1")
        e(f"s_branch L_pw{s}b")
        lab(f"L_pw{s}a")
        e(f"s_waitcnt vmcnt({yq})")
        lab(f"L_pw{s}b")
    else:
        e(f"s_waitcnt vmcnt({yq})")
    n = len(items)
    nv = len(valu)
    if s == -1 and not opts["ns"]:
        pos = [nv] * n
    else:
        pos = [(k * nv) // n for k in range(n)]
        if opts["qsp"]:
            pos = [k * (opts["qsp"] - 1) for k in range(n)]
    k = 0
    for vi in range(nv + 1):
        while k < n and pos[k] == vi:
            emit_item(items[k])
            k += 1
        if vi < nv:
            e(valu[vi])
    if opts["pb"] and 0 <= s <= 12:
        e(f"s_cmp_lg_u32 s{S_BCNT}, s{S_BSTEP}")
        e(f"s_cbranch_scc1 L_pbs{s}")
        e(f"s_getpc_b64 s[{S_RET}:{S_RET+1}]")
        e(f"s_add_u32 s{S_RET}, s{S_RET}, 12")
        e(f"s_addc_u32 s{S_RET+1}, s{S_RET+1}, 0")
        e("s_branch L_pburst")
        lab(f"L_pbs{s}")
        e(f"s_add_u32 s{S_BCNT}, s{S_BCNT}, 1")
    y = younger(("a", st))
    if y is None:
        e("s_waitcnt lgkmcnt(0)")
    else:
        e(f"s_waitcnt vmcnt({y}) lgkmcnt(0)")
    stamp_commit()
    e("s_barrier")
    stamp()

bodies = {}
for s in range(-1, 15):
    start = len(out)
    p_body(s)
    bodies[s] = out[start:]
    del out[start:]
for s in range(1, 5):
  for rep in (4, 8):
    a, b = bodies[s], bodies[s + rep]
    assert len(a) == len(b)
    for i in range(len(a)):
        if re.sub(r"L_p(w|bs)\d+", "L", a[i]) == re.sub(r"L_p(w|bs)\d+", "L", b[i]): continue
        if a[i] != b[i]:
            ma = re.match(r"(\s*s_waitcnt vmcnt\()(\d+)(\).*)", a[i])
            mb = re.match(r"(\s*s_waitcnt vmcnt\()(\d+)(\).*)", b[i])
            assert ma and mb and ma.group(3) == mb.group(3), (a[i], b[i])
            a[i] = ma.group(1) + str(min(int(ma.group(2)), int(mb.group(2)))) + ma.group(3)
stamp()
for s in range(-1, 1):
    out.extend(bodies[s])
e(f"s_mov_b32 s{S_LOOP}, 0")
lab("L_ploop")
for s in range(1, 5):
    out.extend(bodies[s])
e(f"s_add_u32 s{S_LOOP}, s{S_LOOP}, 1")
e(f"s_cmp_lt_u32 s{S_LOOP}, 3")
e("s_cbranch_scc1 L_ploop")
for s in range(13, 15):
    out.extend(bodies[s])
if opts["diag"]:
    e("s_waitcnt lgkmcnt(0)")
    stamp_commit()
    stamp_flush()
if opts["pb"]:
    e("s_endpgm")
    lab("L_pburst")
    for r in range(8):
        for hf in range(2):
            e(f"buffer_load_dwordx4 v[12:15], v8, s[{S_Q}:{S_Q+3}], s{S_BQ} offen offset:{hf*896}")
        e(f"s_add_u32 s{S_BQ}, s{S_BQ}, 14336")
        if r % 2 == 1:
            e(f"buffer_load_dwordx4 v[12:15], v9, s[{S_X}:{S_X+3}], s{S_BX} offen")
            e(f"s_add_u32 s{S_BX}, s{S_BX}, 16384")
    e("s_mov_b32 s71, 2")
    e(f"s_setpc_b64 s[{S_RET}:{S_RET+1}]")
lab("L_end")
e("s_endpgm")
lab("L_codeend")

out.append(f""".section .rodata,"a"
.p2align 6
.amdhsa_kernel {NAME}_kernel
  .amdhsa_next_free_vgpr 256
  .amdhsa_next_free_sgpr 80
  .amdhsa_accum_offset 256
  .amdhsa_group_segment_fixed_size 0
  .amdhsa_kernarg_size 48
  .amdhsa_user_sgpr_count 2
  .amdhsa_user_sgpr_kernarg_segment_ptr 1
  .amdhsa_system_sgpr_workgroup_id_x 1
.end_amdhsa_kernel""")

open(sys.argv[1], "w").write("\n".join(out) + "\n")
```
